```python
import torch

def _softmax(x, axis=-1):
    return torch.softmax(x, dim=axis)
def _gelu(x):
    return torch.nn.functional.gelu(x, approximate="tanh")
def _silu(x):
    return torch.nn.functional.silu(x)
def _sigmoid(x):
    return torch.sigmoid(x)
def _layernorm(x, axis=-1, eps=1e-5):
    m = x.mean(dim=axis, keepdim=True)
    v = x.var(dim=axis, keepdim=True, unbiased=False)
    return (x - m) / torch.sqrt(v + eps)
def _scatter_add(tgt, idx, src, axis=0):
    return tgt.clone().index_add_(axis, idx, src)
def _segment_sum(src, seg, n):
    out = torch.zeros((n,) + src.shape[1:], dtype=src.dtype)
    return out.index_add_(0, seg, src)
def _pad(x, pw):
    flat = tuple(v for pair in reversed(pw) for v in pair)
    return torch.nn.functional.pad(x, flat)

kernel_name = 'parallel_sum__softmax_full_mha__geglu_ffn__prompt'

def setup_inputs():

    _w = (lambda a: (lambda t: t.to(torch.bfloat16) if t.is_floating_point() else t)(torch.as_tensor(a)))
    def _A_setup():
        B, S, D = 1, 2048, 640
        return {
            "x": _w((lambda *s: torch.randn(*s, dtype=torch.bfloat16) * 0.05)(B, S, D)),
            "wqkv": _w((lambda *s: torch.randn(*s, dtype=torch.bfloat16) * 0.2)(D, 3 * D)),
            "wo": _w((lambda *s: torch.randn(*s, dtype=torch.bfloat16) * 0.1)(D, D)),
        }
    _A_in = _A_setup()

    def _B_setup():
        B, S, D, F = 1, 2048, 640, 1728
        return {
            "x": _w((lambda *s: torch.randn(*s, dtype=torch.bfloat16) * 0.05)(B, S, D)),
            "w_gate": _w((lambda *s: torch.randn(*s, dtype=torch.bfloat16) * 0.1)(D, F)),
            "w_up": _w((lambda *s: torch.randn(*s, dtype=torch.bfloat16) * 0.1)(D, F)),
            "w_down": _w((lambda *s: torch.randn(*s, dtype=torch.bfloat16) * 0.1)(F, D)),
        }
    _B_in = _B_setup()

    return {
        "A_x": _A_in["x"],
        "A_wqkv": _A_in["wqkv"],
        "A_wo": _A_in["wo"],
        "B_x": _B_in["x"],
        "B_w_gate": _B_in["w_gate"],
        "B_w_up": _B_in["w_up"],
        "B_w_down": _B_in["w_down"],
    }

def reference(A_x, A_wqkv, A_wo, B_x, B_w_gate, B_w_up, B_w_down):
    def _A_ref(x, wqkv, wo):
        B, S, D = x.shape
        H = 32; Dh = D // H
        qkv = (lambda x, *d: x.permute(*d))((x @ wqkv).reshape(B, S, 3, H, Dh), 2, 0, 3, 1, 4)
        q, k, v = qkv[0], qkv[1], qkv[2]
        scale = Dh ** -0.5
        scores = torch.einsum("bhqd,bhkd->bhqk", q, k) * scale
        p = _softmax(scores, axis=-1)
        o = torch.einsum("bhqk,bhkd->bhqd", p, v)
        return (lambda x, *d: x.permute(*d))(o, 0, 2, 1, 3).reshape(B, S, D) @ wo

    def _B_ref(x, w_gate, w_up, w_down):
        return (_gelu(x @ w_gate) * (x @ w_up)) @ w_down

    x = A_x
    xn = _layernorm(x, axis=-1)
    return x + _A_ref(xn, A_wqkv, A_wo) + _B_ref(xn, B_w_gate, B_w_up, B_w_down)
```

```python
import sys
kernels=[]
def kern(name, bodies, iters=200, nvgpr=128, pre="", nagpr=0):
    s=f"""
.text
.globl {name}
.p2align 8
.type {name},@function
{name}:
  s_load_dwordx4 s[4:7], s[0:1], 0
  v_lshrrev_b32 v1, 6, v0
  s_nop 1
  v_readfirstlane_b32 s20, v1
  v_and_b32 v2, 63, v0
  v_cvt_f32_u32 v3, v2
  v_mul_f32 v3, 0x3c000000, v3
"""
    for r in range(4,nvgpr):
        s+=f"  v_mov_b32 v{r}, v3\n"
    s+=f"  v_lshlrev_b32 v2, 4, v2\n"
    s+=pre
    s+=f"""
  s_waitcnt lgkmcnt(0)
  s_lshr_b32 s21, s20, 2
  s_mov_b32 s12, {iters}
  s_barrier
  s_memtime s[8:9]
  s_memrealtime s[10:11]
  s_waitcnt lgkmcnt(0)
"""
    nb=len(bodies)
    if nb>1:
        s+=f"  s_and_b32 s21, s21, {nb-1}\n"
        for i in range(1,nb):
            s+=f"  s_cmp_eq_u32 s21, {i}\n  s_cbranch_scc1 {name}_L{i}\n"
    for i,b in enumerate(bodies):
        s+=f".p2align 6\n{name}_L{i}:\n{b}\n  s_sub_u32 s12, s12, 1\n  s_cmp_lg_u32 s12, 0\n  s_cbranch_scc1 {name}_L{i}\n  s_branch {name}_end\n"
    s+=f"""
{name}_end:
  s_nop 15
  s_nop 15
  s_memtime s[14:15]
  s_memrealtime s[16:17]
  s_waitcnt lgkmcnt(0)
  s_sub_u32 s14, s14, s8
  s_sub_u32 s16, s16, s10
  v_readfirstlane_b32 s22, v0
  s_load_dword s23, s[0:1], 0
  s_waitcnt lgkmcnt(0)
  v_mov_b32 v4, s14
  v_mov_b32 v5, s16
  s_mul_i32 s24, s2, WPB_{name}
  s_add_u32 s24, s24, s20
  s_lshl_b32 s24, s24, 3
  v_mov_b32 v6, s24
  s_mov_b32 s28, s4
  s_mov_b32 s29, s5
  s_mov_b32 s30, 0x100000
  s_mov_b32 s31, 0x20000
  v_cmp_eq_u32 vcc, 0, v2
  s_and_saveexec_b64 s[26:27], vcc
  buffer_store_dwordx2 v[4:5], v6, s[28:31], 0 offen
  s_waitcnt vmcnt(0)
  s_endpgm
.section .rodata,"a"
.p2align 6
.amdhsa_kernel {name}
  .amdhsa_next_free_vgpr {nvgpr+nagpr}
  .amdhsa_next_free_sgpr 64
  .amdhsa_accum_offset {nvgpr}
  .amdhsa_group_segment_fixed_size 0
  .amdhsa_kernarg_size 16
  .amdhsa_user_sgpr_count 2
  .amdhsa_user_sgpr_kernarg_segment_ptr 1
  .amdhsa_system_sgpr_workgroup_id_x 1
.end_amdhsa_kernel
"""
    kernels.append((name,s,nvgpr+nagpr))

def emit(fname, wpb):
    out='.amdgcn_target "amdgcn-amd-amdhsa--gfx950"\n'
    for n,s,v in kernels:
        out+=f".set WPB_{n}, {wpb[n]}\n"+s
    out+=".amdgpu_metadata\n---\namdhsa.version: [1, 2]\namdhsa.kernels:\n"
    for n,s,v in kernels:
        out+=f"""  - .name: {n}
    .symbol: {n}.kd
    .kernarg_segment_size: 16
    .kernarg_segment_align: 8
    .group_segment_fixed_size: 0
    .private_segment_fixed_size: 0
    .wavefront_size: 64
    .sgpr_count: 64
    .vgpr_count: {v}
    .max_flat_workgroup_size: 1024
    .args:
      - {{.name: kernargs, .size: 16, .offset: 0, .value_kind: by_value}}
"""
    out+="...\n.end_amdgpu_metadata\n"
    open(fname,"w").write(out)

def emit_split(base, wpb, cmdlist, per=60):
    import subprocess
    global kernels
    allk=list(kernels)
    sh=""
    files=[]
    for i in range(0,len(allk),per):
        kernels=allk[i:i+per]
        fn=f"{base}_{i//per}"
        emit(fn+".s",wpb)
        r=subprocess.run(["clang","-x","assembler","-target","amdgcn-amd-amdhsa","-mcpu=gfx950",fn+".s","-o",fn+".co"],capture_output=True,text=True)
        if r.returncode: print(r.stderr[:2000]); raise SystemExit(1)
        names={k[0] for k in kernels}
        sh+=f"./mb_host {fn}.co "+" ".join(" ".join(map(str,c)) for c in cmdlist if c[0] in names)+"\n"
        files.append("mb/"+fn+".co")
    open(base+".cmd","w").write(sh)
    print(files)
```

```python
from gen_mb import *
K={}; cmd=[]
def st(name, kind, flags="", n=48, iters=4):
    pre=f"""
  s_waitcnt lgkmcnt(0)
  s_add_u32 s40, s4, 0x400000
  s_addc_u32 s41, s5, 0
  s_mov_b32 s42, 0x3000000
  s_mov_b32 s43, 0x20000
  s_mul_i32 s44, s2, 0x28000
  v_and_b32 v11, 31, v0
  v_bfe_u32 v12, v0, 5, 1
  v_lshrrev_b32 v13, 6, v0
"""
    if kind=="x2s48":
        pre+="  v_mul_u32_u24 v10, 48, v11\n  v_lshl_add_u32 v10, v12, 3, v10\n  v_lshl_add_u32 v10, v13, 15, v10\n"
        f=lambda i: f"  s_add_u32 s45, s44, {(i//2)*1536 + (i%2)*16}\n  buffer_store_dwordx2 v[16:17], v10, s[40:43], s45 offen {flags}"
    elif kind=="x4lin":
        pre+="  v_and_b32 v10, 63, v0\n  v_lshlrev_b32 v10, 4, v10\n  v_lshl_add_u32 v10, v13, 15, v10\n"
        f=lambda i: f"  s_add_u32 s45, s44, {(i%32)*1024}\n  buffer_store_dwordx4 v[16:19], v10, s[40:43], s45 offen {flags}"
    elif kind=="x4s48":
        pre+="  v_mul_u32_u24 v10, 48, v11\n  v_lshl_add_u32 v10, v12, 4, v10\n  v_lshl_add_u32 v10, v13, 15, v10\n"
        f=lambda i: f"  s_add_u32 s45, s44, {(i%20)*1536}\n  buffer_store_dwordx4 v[16:19], v10, s[40:43], s45 offen {flags}"
    elif kind=="x2s16":
        pre+="  v_and_b32 v10, 63, v0\n  v_lshlrev_b32 v10, 4, v10\n  v_lshl_add_u32 v10, v13, 15, v10\n"
        f=lambda i: f"  s_add_u32 s45, s44, {(i//2%32)*1024+(i%2)*8}\n  buffer_store_dwordx2 v[16:17], v10, s[40:43], s45 offen {flags}"
    elif kind=="x4row1280":
        pre+="  v_mul_u32_u24 v10, 1280, v11\n  v_lshl_add_u32 v10, v12, 4, v10\n  v_mul_u32_u24 v13, 40960, v13\n  v_add_u32 v10, v13, v10\n"
        f=lambda i: f"  s_add_u32 s45, s44, {(i%40)*32}\n  buffer_store_dwordx4 v[16:19], v10, s[40:43], s45 offen {flags}"
    b="\n".join(f(i) for i in range(n))+"\n  s_waitcnt vmcnt(0)\n"
    kern(name,[b],iters=iters,pre=pre); K[name]=4; cmd.append((name,256,256,0))

st("empty","x4lin",n=0,iters=1)
for kind,n in (("x4lin",16),("x2s16",32),("x2s48",32),("x4row1280",16)):
    st(kind,kind,iters=1,n=n); st(kind+"_sc1",kind,"sc1",iters=1,n=n); st(kind+"_nt",kind,"nt",iters=1,n=n); st(kind+"_sc01",kind,"sc0 sc1",iters=1,n=n)
st("x4lin_n4","x4lin",n=4,iters=1); st("x4lin_n8","x4lin",n=8,iters=1); st("x4lin_n4_sc1","x4lin","sc1",n=4,iters=1); st("x4lin_n8_sc1","x4lin","sc1",n=8,iters=1)
emit_split("mb10",K,cmd)
```

```python
from gen_mb import *
import re
K={}; cmd=[]
L=open('zx.s').read().split('\n')
i0=[i for i,l in enumerate(L) if l.startswith('gu_poll1_d')][0]
bars=[i for i in range(i0,len(L)) if 's_barrier' in L[i]]
seg=L[bars[3]+1:bars[7]+1]
seg=[l for l in seg if not re.search(r'buffer_|s_add_u32|s_cmp|s_cselect|readfirstlane|s_cbranch|:$|vmcnt',l)]
def add(name,s,rand,iters=30):
    pre="".join(f"  v_mov_b32 v{r}, v2\n" for r in range(208,214))
    if rand:
        pre+="""
  s_waitcnt lgkmcnt(0)
  s_mov_b32 s40, s6
  s_mov_b32 s41, s7
  s_mov_b32 s42, 0x4000000
  s_mov_b32 s43, 0x20000
  s_lshl_b32 s45, s2, 17
  s_mul_i32 s46, s20, 40960
"""
        for i in range(40):
            pre+=f"  s_add_u32 m0, s46, {i*1024}\n  s_add_u32 s45, s45, 1024\n  buffer_load_dwordx4 v2, s[40:43], s45 offen lds\n"
        pre+="  s_waitcnt vmcnt(0)\n"
        for i in range(64):
            pre+=f"  s_add_u32 s45, s45, 1024\n  buffer_load_dwordx4 a[{4*i}:{4*i+3}], v2, s[40:43], s45 offen\n"
            if i%32==31: pre+="  s_waitcnt vmcnt(0)\n"
        for i in range(32,48):
            pre+=f"  s_add_u32 s45, s45, 1024\n  buffer_load_dwordx4 v[{4*i}:{4*i+3}], v2, s[40:43], s45 offen\n"
        pre+="  s_waitcnt vmcnt(0)\n"
    kern(name,["\n".join(s)],iters=iters,nvgpr=256,nagpr=256,pre=pre); K[name]=4; cmd.append((name,256,256,163840))
def redir(l):
    m=re.match(r'(\s*v_(?:mul|cvt_pk_bf16)_\w+ )v(\d+)(,.*)',l)
    if m and 128<=int(m.group(2))<192: return f"{m.group(1)}v{232+int(m.group(2))%12}{m.group(3)}"
    return l
seg2=[redir(l) for l in seg]
nov=[l for l in seg if not re.match(r'\s*v_(mul|fma|exp|rcp|cvt)',l)]
for r in (0,1):
    add(f"full_r{r}",seg2,r)
    add(f"nov_r{r}",nov,r)
    add(f"full_r{r}_s",seg2,r,iters=6)
    add(f"nov_r{r}_s",nov,r,iters=6)
emit_split("mb24",K,cmd)
```

```python
import re

def R(f, i, n=1):
    if n == 1:
        return f"{f}{i}"
    return f"{f}[{i}:{i+n-1}]"
def V(i, n=1): return R('v', i, n)
def A(i, n=1): return R('a', i, n)
def S(i, n=1): return R('s', i, n)

_re_r = re.compile(r'^([vas])(\d+)$')
_re_rr = re.compile(r'^([vas])\[(\d+):(\d+)\]$')

def regs(op):
    if not isinstance(op, str):
        return set()
    o = op.strip()
    if o.startswith('-'): o = o[1:]
    if o.startswith('|') and o.endswith('|'): o = o[1:-1]
    m = _re_r.match(o)
    if m: return {(m.group(1), int(m.group(2)))}
    m = _re_rr.match(o)
    if m: return {(m.group(1), i) for i in range(int(m.group(2)), int(m.group(3)) + 1)}
    if o == 'vcc': return {('s', 106), ('s', 107)}
    if o == 'vcc_lo': return {('s', 106)}
    if o == 'vcc_hi': return {('s', 107)}
    if o == 'exec': return {('s', 126), ('s', 127)}
    if o == 'exec_lo': return {('s', 126)}
    if o == 'exec_hi': return {('s', 127)}
    if o == 'm0': return {('s', 124)}
    if o == 'scc': return set()
    return set()

TRANS = ('v_exp_f32', 'v_log_f32', 'v_rcp_f32', 'v_rsq_f32', 'v_sqrt_f32', 'v_sin_f32', 'v_cos_f32')
EXEC = {('s', 126), ('s', 127)}
VCC = {('s', 106), ('s', 107)}
M0 = {('s', 124)}

class Inst:
    __slots__ = ('op', 'ops', 'mods', 'kind', 'rd', 'wr', 'tag', 'prewait', 'comment', 'label', 'passes', 'nops', 'waitfor', 'target')
    def __init__(self, op, ops=(), mods='', tag=None, comment=''):
        self.op = op; self.ops = list(ops); self.mods = mods; self.tag = tag; self.comment = comment
        self.prewait = [None, None]
        self.label = None; self.passes = 0; self.nops = 0; self.waitfor = None; self.target = None
        self.classify()
    def classify(self):
        op = self.op; o = self.ops
        rd = set(); wr = set()
        def rall(lst):
            s = set()
            for x in lst: s |= regs(x)
            return s
        if op == 'label':
            self.kind = 'label'
        elif op == 'raw':
            self.kind = 'raw'
        elif op.startswith('v_mfma'):
            self.kind = 'mfma'
            wr = regs(o[0]); rd = rall(o[1:])
            self.passes = 8 if '32x32' in op else (4 if '16x16' in op else 2)
        elif op.startswith('v_'):
            base = op.replace('_e32', '').replace('_e64', '').replace('_dpp', '').replace('_sdwa', '')
            self.kind = 'trans' if base in TRANS else 'valu'
            if op.startswith('v_cmpx'):
                wr = set(EXEC) | regs(o[0]); rd = rall(o[1:])
            elif op.startswith('v_cmp'):
                wr = regs(o[0]); rd = rall(o[1:])
            elif op.startswith('v_permlane') and 'swap' in op:
                wr = rall(o[:2]); rd = rall(o[:2])
            elif op.startswith(('v_add_co', 'v_sub_co', 'v_subrev_co', 'v_addc_co', 'v_subb_co')):
                wr = rall(o[:2]); rd = rall(o[2:])
            elif op.startswith('v_mad_u64_u32') or op.startswith('v_mad_i64_i32'):
                wr = rall(o[:2]); rd = rall(o[2:])
            elif op == 'v_nop':
                pass
            else:
                wr = regs(o[0]); rd = rall(o[1:])
                if op.startswith(('v_fmac', 'v_mac', 'v_dot2c', 'v_pk_fmac', 'v_writelane')) or '_dpp' in op or 'UNUSED_PRESERVE' in self.mods:
                    rd |= regs(o[0])
                if op.startswith('v_cndmask') and len(o) == 3:
                    rd |= VCC
            rd |= EXEC
        elif op.startswith('ds_'):
            self.kind = 'ds'
            if op.startswith('ds_read') or '_rtn' in op or op.startswith(('ds_bpermute', 'ds_permute', 'ds_swizzle')):
                wr = regs(o[0]); rd = rall(o[1:])
            else:
                rd = rall(o)
            rd |= EXEC
        elif op.startswith(('buffer_', 'global_')):
            self.kind = 'vmem'
            toks = self.mods.split()
            if op in ('buffer_inv', 'buffer_wbl2'):
                pass
            elif 'lds' in toks or '_lds_' in op:
                rd = rall(o) | M0
            elif '_load' in op:
                wr = regs(o[0]); rd = rall(o[1:])
            elif '_atomic' in op:
                if 'sc0' in toks:
                    if op.startswith('global_'):
                        wr = regs(o[0]); rd = rall(o[1:])
                    else:
                        wr = regs(o[0]); rd = rall(o)
                else:
                    rd = rall(o)
            else:
                rd = rall(o)
            rd |= EXEC
        elif op.startswith(('s_load', 's_buffer_load', 's_memtime', 's_memrealtime')):
            self.kind = 'smem'
            wr = regs(o[0]); rd = rall(o[1:])
        elif op in ('s_waitcnt', 's_barrier', 's_nop', 's_endpgm', 's_setprio', 's_sleep', 's_sethalt'):
            self.kind = op[2:]
        elif op.startswith(('s_branch', 's_cbranch')):
            self.kind = 'branch'; self.target = o[0]
            if 'exec' in op: rd = set(EXEC)
            if 'vcc' in op: rd = set(VCC)
        elif op.startswith('s_'):
            self.kind = 'salu'
            if op.startswith(('s_cmp', 's_bitcmp')):
                rd = rall(o)
            elif 'saveexec' in op:
                wr = regs(o[0]) | EXEC; rd = rall(o[1:]) | EXEC
            elif op.startswith('s_setreg'):
                rd = rall(o)
            else:
                wr = regs(o[0]); rd = rall(o[1:])
        else:
            raise ValueError('unknown op ' + op)
        self.rd = rd; self.wr = wr
    def text(self):
        if self.kind == 'label': return f"{self.ops[0]}:"
        if self.kind == 'raw': return self.ops[0]
        def f(x):
            if isinstance(x, float):
                import struct
                return '0x%08x' % struct.unpack('<I', struct.pack('<f', x))[0] if x not in (0.0, 0.5, 1.0, 2.0, 4.0, -0.5, -1.0, -2.0, -4.0) else repr(x)
            if isinstance(x, int):
                return str(x) if -16 <= x <= 64 else hex(x & 0xffffffff)
            return x
        s = '  ' + self.op
        if self.ops:
            if self.op == 's_waitcnt': s += ' ' + ' '.join(self.ops)
            else: s += ' ' + ', '.join(f(x) for x in self.ops)
        if self.mods: s += ' ' + self.mods
        if self.comment: s += ' ; ' + self.comment
        return s
    def states(self):
        if self.kind in ('label', 'raw'): return 0
        if self.kind == 'nop': return int(self.ops[0]) + 1
        return 1
    def size(self):
        return 8

def I(op, *ops, mods='', tag=None, comment=''):
    return Inst(op, ops, mods, tag, comment)

class Prog:
    def __init__(self):
        self.ins = []
    def __call__(self, op, *ops, mods='', tag=None, comment=''):
        i = Inst(op, ops, mods, tag, comment)
        self.ins.append(i)
        return i
    def add(self, i):
        if isinstance(i, list): self.ins.extend(i)
        else: self.ins.append(i)
    def label(self, name):
        self.ins.append(Inst('label', [name]))
    def raw(self, txt):
        self.ins.append(Inst('raw', [txt]))
    def wait_tag(self, *tags):
        i = Inst('raw', ['']); i.waitfor = set(tags); self.ins.append(i); return i
    def wait(self, vm=None, lgkm=None):
        i = Inst('raw', ['']); i.prewait = [vm, lgkm]; i.waitfor = 'explicit'; self.ins.append(i); return i

class WState:
    def __init__(self):
        self.vm = []
        self.lg = []
    def copy(self):
        w = WState(); w.vm = list(self.vm); w.lg = list(self.lg); return w

def _merge(a, b):
    if a is None: return b
    if b is None: return a
    return min(a, b)

def autowait(ins, st=None):
    st = st or WState()
    for i in ins:
        need_vm = None; need_lg = None
        if i.waitfor == 'explicit':
            need_vm, need_lg = i.prewait
        elif i.waitfor:
            for k, o in enumerate(st.vm):
                if o.tag in i.waitfor: need_vm = _merge(need_vm, len(st.vm) - 1 - k)
            for k, o in enumerate(st.lg):
                if o.tag in i.waitfor: need_lg = _merge(need_lg, len(st.lg) - 1 - k)
        touched = (i.rd | i.wr)
        if touched:
            for k, o in enumerate(st.vm):
                if o.wr & touched: need_vm = _merge(need_vm, len(st.vm) - 1 - k)
            for k, o in enumerate(st.lg):
                if o.wr & touched: need_lg = _merge(need_lg, len(st.lg) - 1 - k)
        if i.op == 's_waitcnt':
            for t in i.ops:
                m = re.match(r'vmcnt\((\d+)\)', t)
                if m: n = int(m.group(1)); st.vm = st.vm[len(st.vm) - n:] if n < len(st.vm) else st.vm
                m = re.match(r'lgkmcnt\((\d+)\)', t)
                if m: n = int(m.group(1)); st.lg = st.lg[len(st.lg) - n:] if n < len(st.lg) else st.lg
        if need_lg is not None and any(o.kind == 'smem' for o in st.lg):
            need_lg = 0
        if need_vm is not None: need_vm = min(need_vm, 63)
        if need_lg is not None: need_lg = min(need_lg, 15)
        i.prewait = [_merge(i.prewait[0], need_vm), _merge(i.prewait[1], need_lg)]
        vmw, lgw = i.prewait
        if vmw is not None and vmw < len(st.vm): st.vm = st.vm[len(st.vm) - vmw:] if vmw else []
        if lgw is not None and lgw < len(st.lg): st.lg = st.lg[len(st.lg) - lgw:] if lgw else []
        if i.kind == 'vmem':
            st.vm.append(i)
        elif i.kind in ('ds', 'smem'):
            st.lg.append(i)
    return st

def expand_waits(ins):
    out = []
    for i in ins:
        vmw, lgw = i.prewait
        if vmw is not None or lgw is not None:
            ops = []
            if vmw is not None: ops.append(f'vmcnt({vmw})')
            if lgw is not None: ops.append(f'lgkmcnt({lgw})')
            out.append(Inst('s_waitcnt', ops))
        if i.kind == 'raw' and i.ops[0] == '':
            continue
        out.append(i)
    return out

def _isv(s): return {r for r in s if r[0] in 'va'}
def _iss(s): return {r for r in s if r[0] == 's'}

def need_states(p, c):
    n = 0
    pk, ck = p.kind, c.kind
    cvalu = ck in ('valu', 'trans')
    pvalu = pk in ('valu', 'trans')
    if pvalu:
        pv = _isv(p.wr); ps = _iss(p.wr)
        if ck == 'mfma' and pv & c.rd: n = max(n, 2)
        if ck == 'mfma' and ps & EXEC: n = max(n, 4)
        if cvalu:
            if pk == 'trans' and ck != 'trans' and pv & c.rd: n = max(n, 1)
            if pk == 'trans' and ck == 'trans' and pv & c.rd: n = max(n, 1)
            if c.op.startswith('v_permlane') and pv & c.rd: n = max(n, 2)
            if '_dpp' in c.op and pv & c.rd: n = max(n, 2)
            if '_dpp' in c.op and ps & EXEC: n = max(n, 5)
            if c.op.startswith(('v_readlane', 'v_readfirstlane')) and pv & c.rd: n = max(n, 1)
            if (ps - EXEC) & c.rd:
                n = max(n, 4 if c.op.startswith(('v_readlane', 'v_writelane', 'v_div_fmas')) else 2)
            if ps & EXEC and c.op.startswith(('v_readlane', 'v_readfirstlane', 'v_writelane', 'v_permlane')): n = max(n, 4)
            if ('_sdwa' in p.op or 'op_sel' in p.mods) and pv & (c.rd | c.wr): n = max(n, 1)
            if p.op.startswith('v_dot') and pv & (c.rd | c.wr):
                same_c = (p.op == c.op and not (pv & (regs(c.ops[1]) | regs(c.ops[2]))))
                n = max(n, 0 if same_c else 3)
        if ck == 'vmem' and ps & c.rd: n = max(n, 5)
        if ck == 'branch' and ps & c.rd: n = max(n, 5)
        if ck in ('salu', 'smem') and ps & c.rd: n = max(n, 1)
        if p.op.startswith('v_dot') and ck in ('vmem', 'ds', 'mfma') and pv & c.rd: n = max(n, 3)
    if pk == 'mfma':
        D = p.wr
        tbl_full = {2: 5, 4: 8, 8: 12, 16: 20}[p.passes]
        tbl_c = {2: 4, 4: 6, 8: 10, 16: 18}[p.passes]
        if ck == 'mfma':
            cC = regs(c.ops[3]); cAB = regs(c.ops[1]) | regs(c.ops[2])
            if D & cAB: n = max(n, tbl_full)
            if D & cC:
                if cC == D and c.passes == p.passes: n = max(n, 2 if p.passes == 2 else 0)
                else: n = max(n, tbl_c)
            elif D & c.wr:
                n = max(n, tbl_c)
        elif cvalu or ck in ('vmem', 'ds'):
            if D & (c.rd | c.wr): n = max(n, tbl_full)
        if cvalu:
            pC = regs(p.ops[3])
            if pC & c.wr: n = max(n, {2: 1, 4: 3, 8: 7, 16: 15}[p.passes])
        if ck in ('ds', 'vmem'):
            pC = regs(p.ops[3])
            if pC & c.wr: n = max(n, {2: 1, 4: 3, 8: 7, 16: 15}[p.passes])
    if pk == 'vmem' and ('store' in p.op or 'atomic' in p.op) and ('x4' in p.op or 'x3' in p.op):
        data = regs(p.ops[0]) if p.op.startswith('buffer') else regs(p.ops[1])
        if data & c.wr: n = max(n, 2)
    if pk == 'salu':
        if p.wr & M0 and ck == 'vmem' and c.rd & M0: n = max(n, 1)
        if p.wr & M0 and c.op.startswith(('s_sendmsg', 's_movrel')): n = max(n, 1)
        if p.op.startswith('s_setreg'): n = max(n, 2) if c.op.startswith(('s_getreg', 's_setreg')) else n
    return n

LOOKBACK = 24
def fix_hazards(ins, verbose=False):
    out = []
    inserted = 0
    for c in ins:
        if c.kind in ('label', 'raw'):
            out.append(c); continue
        need = 0; dist = 0
        for p in reversed(out):
            if dist >= LOOKBACK: break
            if p.kind == 'branch' and p.op == 's_branch': break
            if p.kind == 'endpgm': break
            if p.kind not in ('label', 'raw'):
                n = need_states(p, c) - dist
                if n > need: need = n
            dist += p.states()
        while need > 0:
            k = min(need, 16)
            out.append(Inst('s_nop', [k - 1])); inserted += k
            need -= k
        out.append(c)
    labels = {i.ops[0]: k for k, i in enumerate(out) if i.kind == 'label'}
    for k, b in enumerate(out):
        if b.kind == 'branch' and b.target in labels:
            pre = []; d = 0
            j = k
            while j >= 0 and d < LOOKBACK:
                p = out[j]
                if j != k and (p.op == 's_branch' or p.kind == 'endpgm'): break
                pre.append(p); d += p.states(); j -= 1
            pre.reverse()
            seq = pre + out[labels[b.target]: labels[b.target] + 40]
            for x in range(len(pre), len(seq)):
                c = seq[x]
                if c.kind in ('label', 'raw'): continue
                dist = 0
                for y in range(x - 1, -1, -1):
                    p = seq[y]
                    if y < len(pre) and p.kind not in ('label', 'raw'):
                        if need_states(p, c) > dist:
                            raise RuntimeError(f"hazard across branch {b.text()}: {p.text()} -> {c.text()} (dist {dist})")
                    dist += p.states()
                    if dist >= LOOKBACK: break
                if c.op == 's_branch' or c.kind == 'endpgm': break
    if verbose: print('nop states inserted:', inserted)
    return out

def finish(ins, verbose=False):
    ins = expand_waits(ins)
    ins = fix_hazards(ins, verbose)
    return '\n'.join(i.text() for i in ins) + '\n'

def kernel_desc(name, nvgpr, accum, nsgpr=102):
    return f""".section .rodata,"a"
.p2align 6
.amdhsa_kernel {name}
  .amdhsa_next_free_vgpr {nvgpr}
  .amdhsa_next_free_sgpr {nsgpr}
  .amdhsa_accum_offset {accum}
  .amdhsa_group_segment_fixed_size 0
  .amdhsa_kernarg_size 80
  .amdhsa_user_sgpr_count 2
  .amdhsa_user_sgpr_kernarg_segment_ptr 1
  .amdhsa_system_sgpr_workgroup_id_x 1
.end_amdhsa_kernel
"""

def kernel_head(name):
    return f""".text
.globl {name}
.p2align 8
.type {name},@function
{name}:
"""

def interleave(main, fill, budget):
    out = []
    for i in main:
        out.append(i)
        if i.kind == 'mfma':
            b = budget
            while fill and b > 0:
                f = fill[0]
                c = 8 if f.kind == 'trans' else (0 if f.kind == 'raw' else 4)
                if c > b and b < budget: break
                out.append(fill.pop(0)); b -= c
    return out
```

```python
from asmlib import *

NAME = 'parallel_sum__softmax_full_mha__geglu_ffn__prompt'
WS_QK = 0
WS_VT = 0x500000
WS_H = 0x800000
WS_OF = 0x1000000
WS_MEAN = 0x1400000
WS_RSTD = WS_MEAN + 0x2000
WS_CS = WS_MEAN + 0x4000
WS_CSP = WS_MEAN + 0x4000
WS_TSP = WS_MEAN + 0x40000
WS_WP = 0x1800000
WP_CG = 40 * 5120
WS_SIZE = 0x10000000
QK_TT = 160 * 512
VT_TT = 4 * 640 * 16
H_TT = 108 * 1024
OF_TT = 40 * 1024
LOG2E = 1.4426950408889634
QSCALE = LOG2E / (20 ** 0.5)
BIAS = 8192

def srd(p, dst, ptr, nbytes, bias=0):
    if bias:
        p('s_sub_u32', S(dst), S(ptr), bias)
        p('s_subb_u32', S(dst + 1), S(ptr + 1), 0)
    else:
        p('s_mov_b32', S(dst), S(ptr))
        p('s_mov_b32', S(dst + 1), S(ptr + 1))
    p('s_mov_b32', S(dst + 2), nbytes + bias)
    p('s_mov_b32', S(dst + 3), 0x00020000)

import os
PROF = bool(os.environ.get('PROF'))
WS_PROF = 0x1500000
sSTAMP = 80
def stamp(k):
    if not PROF or (os.environ.get('PROFST') and k != 0): return []
    return [I('s_memrealtime', S(sSTAMP + 2 * k, 2))]
def stamp_init():
    if not PROF: return []
    return [I('s_mov_b32', S(sSTAMP + k), 0) for k in range(20)] + stamp(0) + ([] if os.environ.get('PROFST') else [I('s_memtime', S(sSTAMP + 12, 2))])
def stamp_flush(kid, vt, wave_s):
    if not PROF: return []
    o = [I('s_waitcnt', 'vmcnt(0)')] + stamp(9) + ([] if os.environ.get('PROFST') else [I('s_memtime', S(sSTAMP + 14, 2))]) + [I('s_waitcnt', 'lgkmcnt(0)')]
    o.append(I('s_mov_b64', 'exec', 1))
    o.append(I('s_mov_b32', S(76), S(22))); o.append(I('s_mov_b32', S(77), S(23)))
    o.append(I('s_mov_b32', S(78), WS_SIZE)); o.append(I('s_mov_b32', S(79), 0x00020000))
    o.append(I('s_lshl_b32', S(75), S(2), 4))
    o.append(I('s_add_u32', S(75), S(75), S(wave_s)))
    o.append(I('s_lshl_b32', S(75), S(75), 6))
    o.append(I('s_add_u32', S(75), S(75), WS_PROF + kid * 0x40000))
    o.append(I('v_mov_b32', V(vt), 0))
    for k in range(16 if os.environ.get('PROFST') else 10):
        o.append(I('v_mov_b32', V(vt + 1), S(sSTAMP + (k if os.environ.get('PROFST') else 2 * k))))
        o.append(I('buffer_store_dword', V(vt + 1), V(vt), S(76, 4), S(75), mods=f'offen offset:{4*k}'))
    return o

def stampc(k):
    if not PROF: return []
    return [I('s_memtime', S(sSTAMP + 2 * k, 2))]
def flag(name, default=0):
    return int(os.environ.get(name, default))
```

```python
from common import *

CNT_A, CNT_B = 32, 64
NT = ' nt' if flag('NT', 1) else ''
def gen_stats(p, sj, pf=None, pre='st'):
    sX, sW, sWS, sDB, sWB, sWC = 32, 36, 40, 64, 68, 72
    sWV, sSTR, sL0, sLB, sCSB = 44, 49, 50, 51, 53
    lane = V(1)
    p('v_lshrrev_b32', V(2), 6, V(0))
    p('v_readfirstlane_b32', S(sWV), V(2))
    p('s_and_b32', S(62), S(sj), 1)
    p('s_bfe_u32', S(63), S(sj), (2 << 16) | 1)
    p('s_lshr_b32', S(61), S(sj), 3)
    p('s_lshl_b32', S(45), S(62), 4)
    p('s_lshl_b32', S(46), S(63), 2)
    p('s_add_u32', S(45), S(45), S(46))
    p('s_add_u32', S(45), S(45), S(61))
    p('v_lshrrev_b32', V(3), 4, lane)
    p('v_and_b32', V(4), 15, lane)
    p('v_mul_u32_u24', V(5), 1280, V(3))
    p('v_lshl_add_u32', V(5), V(4), 4, V(5))
    p('s_lshl_b32', S(46), S(45), 2)
    p('s_add_u32', S(46), S(46), S(sWV))
    p('s_mul_i32', S(46), S(46), 16 * 1280)
    p.wait(lgkm=0)
    srd(p, sX, 4, 2048 * 1280)
    R0 = 24
    for g in range(4):
        for q in range(5):
            p('buffer_load_dwordx4', V(R0 + (g * 5 + q) * 4, 4), V(5), S(sX, 4), S(46), mods=f'offen offset:{q*256}{NT}')
        p('s_add_u32', S(46), S(46), 4 * 1280)
    srd(p, sWS, 22, WS_SIZE)
    srd(p, sWC, 22, WS_SIZE)
    srd(p, sDB, 20, 256)
    p('s_lshl_b32', S(62), S(62), 2)
    p('s_add_u32', S(62), S(62), S(61))
    p('s_mul_i32', S(63), S(63), 7)
    p('s_add_u32', S(63), S(63), S(62))
    p('s_lshr_b32', S(47), S(63), 1)
    p('s_and_b32', S(48), S(63), 1)
    p('s_add_u32', S(54), S(sWV), 3)
    p('s_bfe_u32', S(55), S(54), (1 << 16) | 1)
    p('s_and_b32', S(54), S(54), 1)
    p('s_cmp_lt_u32', S(47), 5)
    p('s_cbranch_scc1', f'{pre}_qkv')
    p('s_cmp_eq_u32', S(48), 0)
    p('s_cselect_b32', S(sW), S(12), S(14))
    p('s_cselect_b32', S(sW + 1), S(13), S(15))
    p('s_mov_b32', S(sW + 2), 640 * 3456)
    p('s_mov_b32', S(sW + 3), 0x00020000)
    p('s_mov_b32', S(sSTR), 3456)
    p('s_sub_u32', S(sL0), S(47), 5)
    p('s_mul_i32', S(sL0), S(sL0), 3)
    p('s_add_u32', S(sLB), S(sL0), S(55))
    p('s_add_u32', S(sLB), S(sLB), 1)
    p('s_mul_i32', S(sCSB), S(48), 27)
    p('s_add_u32', S(sCSB), S(sCSB), 30)
    p('s_branch', f'{pre}_go')
    p.label(f'{pre}_qkv')
    srd(p, sW, 6, 640 * 3840)
    p('s_mov_b32', S(sSTR), 3840)
    p('s_lshl_b32', S(sL0), S(47), 2)
    p('s_add_u32', S(sL0), S(sL0), S(48))
    p('s_add_u32', S(sLB), S(sL0), 2)
    p('s_lshl_b32', S(52), S(47), 1)
    p('s_add_u32', S(52), S(52), 20)
    p('s_add_u32', S(52), S(52), S(48))
    p('s_cmp_eq_u32', S(55), 1)
    p('s_cselect_b32', S(sLB), S(52), S(sLB))
    p('s_mov_b32', S(sCSB), 0)
    p.label(f'{pre}_go')
    p('s_cmp_lt_u32', S(62), 7)
    p('s_cselect_b32', S(sW + 2), S(sW + 2), 0)
    p('s_cselect_b32', S(sWC + 2), WS_SIZE, 0)
    p('v_lshrrev_b32', V(6), 3, lane)
    p('v_mul_lo_u32', V(6), V(6), S(sSTR))
    p('v_and_b32', V(7), 7, lane)
    p('v_lshl_add_u32', V(6), V(7), 4, V(6))
    p('s_lshl_b32', S(57), S(sSTR), 3)
    p('s_mul_i32', S(56), S(sWV), 20)
    p('s_mul_i32', S(56), S(56), S(57))
    p('s_lshl_b32', S(58), S(sL0), 7)
    p('s_add_u32', S(56), S(56), S(58))
    RL = R0 + 80
    for q in range(20):
        p('buffer_load_dwordx4', V(RL + q * 4, 4), V(6), S(sW, 4), S(56), mods=f'offen{NT}')
        p('s_add_u32', S(56), S(56), S(57))
    if pf: pf(p)
    p.add(stamp(2))
    p('s_mov_b32', S(sWB), S(sW)); p('s_mov_b32', S(sWB + 1), S(sW + 1)); p('s_mov_b32', S(sWB + 3), 0x00020000)
    p('s_cmp_eq_u32', S(sWV), 0)
    p('s_cselect_b32', S(sWB + 2), 0, S(sW + 2))
    p('s_mul_i32', S(59), S(54), 40)
    p('s_mul_i32', S(59), S(59), S(57))
    p('s_lshl_b32', S(58), S(sLB), 7)
    p('s_add_u32', S(59), S(59), S(58))
    p('s_mov_b32', S(56), S(59))
    def ldb(q):
        p('buffer_load_dwordx4', V(R0 + q * 4, 4), V(6), S(sWB, 4), S(56), mods=f'offen{NT}')
        p('s_add_u32', S(56), S(56), S(57))
    p('v_mov_b32', V(8), 0x3f803f80)
    for g in range(4):
        for r in range(20):
            x = V(R0 + g * 20 + r)
            p('v_dot2_f32_bf16', V(10 + (r & 1)), x, V(8), V(10 + (r & 1)) if r > 1 else 0)
            p('v_dot2_f32_bf16', V(12 + (r & 1)), x, x, V(12 + (r & 1)) if r > 1 else 0)
        for q in range(5): ldb(g * 5 + q)
        p('v_add_f32', V(10), V(10), V(11))
        p('v_add_f32', V(12), V(12), V(13))
        for sh in (8, 4, 2, 1):
            p('v_add_f32_dpp', V(10), V(10), V(10), mods=f'row_ror:{sh} row_mask:0xf bank_mask:0xf')
            p('v_add_f32_dpp', V(12), V(12), V(12), mods=f'row_ror:{sh} row_mask:0xf bank_mask:0xf')
        if g == 0:
            p('v_mov_b32', V(14), V(10)); p('v_mov_b32', V(15), V(12))
        else:
            p('v_cmp_eq_u32', S(62, 2), g, V(4))
            p('v_cndmask_b32', V(14), V(14), V(10), S(62, 2))
            p('v_cndmask_b32', V(15), V(15), V(12), S(62, 2))
    p.add(stamp(3))
    p('v_mul_f32', V(14), 1.0 / 640, V(14))
    p('v_mul_f32', V(15), 1.0 / 640, V(15))
    p('v_fma_f32', V(15), '-' + V(14), V(14), V(15))
    p('v_max_f32', V(15), 0, V(15))
    p('v_add_f32', V(15), 1e-5, V(15))
    p('v_rsq_f32', V(15), V(15))
    p('v_lshl_add_u32', V(9), V(4), 2, V(3))
    p('v_lshlrev_b32', V(9), 2, V(9))
    p('s_lshl_b32', S(58), S(sWV), 6)
    p('s_add_u32', S(58), S(58), 8192)
    p('v_add_u32', V(9), S(58), V(9))
    p('v_cmp_gt_u32', 'vcc', 4, V(4))
    p('v_mov_b32', V(10), 12288)
    p('v_cndmask_b32', V(9), V(10), V(9), 'vcc')
    p('ds_write_b32', V(9), V(14))
    p('ds_write_b32', V(9), V(15), mods='offset:256')
    p('v_mov_b32', V(8), 0x00003f80)
    p('v_mov_b32', V(9), 0x3f800000)
    p('v_lshlrev_b32', V(2), 8, V(3))
    p('v_lshl_add_u32', V(2), V(7), 5, V(2))
    p('s_lshl_b32', S(58), S(sWV), 10)
    p('v_add_u32', V(2), S(58), V(2))
    p('v_lshlrev_b32', V(11), 2, lane)
    def line(base, n, after=None):
        for q in range(n):
            b = base + q * 4
            for r in range(4):
                p('v_dot2_f32_bf16', V(12 + 2 * r), V(b + r), V(8), V(12 + 2 * r) if q else 0)
                p('v_dot2_f32_bf16', V(13 + 2 * r), V(b + r), V(9), V(13 + 2 * r) if q else 0)
            if after: after(q)
        for k in range(8):
            p('v_add_f32_dpp', V(12 + k), V(12 + k), V(12 + k), mods='row_ror:8 row_mask:0xf bank_mask:0xf')
    line(RL, 20, lambda q: ldb(20 + q))
    p('ds_write_b128', V(2), V(12, 4))
    p('ds_write_b128', V(2), V(16, 4), mods='offset:16')
    p.add(stamp(4))
    p.wait(lgkm=0)
    p('s_barrier')
    p.add(stamp(5))
    def signal(off):
        p.wait(vm=0)
        p('s_mov_b64', 'exec', 1)
        p('v_mov_b32', V(12), 1)
        p('v_mov_b32', V(13), 0)
        p('buffer_atomic_add', V(12), V(13), S(sDB, 4), 0, mods=f'offen offset:{off} sc1')
        p('s_mov_b64', 'exec', -1)
    def reduce(addr, n):
        for k in range(n // 2): p('ds_read2st64_b32', V(12 + 2 * k, 2), addr, mods=f'offset0:{2*k} offset1:{2*k+1}')
        st = 1
        while st < n:
            for k in range(0, n, 2 * st): p('v_add_f32', V(12 + k), V(12 + k), V(12 + k + st))
            st *= 2
    p('s_cmp_lg_u32', S(sWV), 0)
    p('s_cbranch_scc1', f'{pre}_b')
    p('ds_read2st64_b32', V(4, 2), V(11), mods='offset0:32 offset1:33')
    p.wait(vm=0)
    reduce(V(11), 16)
    p('s_lshl_b32', S(54), S(45), 8)
    p('s_add_u32', S(55), S(54), WS_MEAN)
    p('s_add_u32', S(54), S(54), WS_RSTD)
    p('buffer_store_dword', V(4), V(11), S(sWS, 4), S(55), mods='offen sc1')
    p('buffer_store_dword', V(5), V(11), S(sWS, 4), S(54), mods='offen sc1')
    p('s_add_u32', S(54), S(sL0), S(sCSB))
    p('s_lshl_b32', S(54), S(54), 8)
    p('s_add_u32', S(54), S(54), WS_CS)
    p('buffer_store_dword', V(12), V(11), S(sWC, 4), S(54), mods='offen sc1')
    signal(0)
    p.add(stamp(1))
    p('s_mov_b32', S(sWB + 2), S(sW + 2))
    p('s_mov_b32', S(56), S(59))
    for q in range(40): ldb(q)
    p.label(f'{pre}_b')
    line(R0, 40)
    p('s_add_u32', S(58), S(sWV), 3)
    p('s_and_b32', S(58), S(58), 3)
    p('s_sub_u32', S(58), S(58), S(sWV))
    p('s_lshl_b32', S(58), S(58), 10)
    p('s_add_u32', S(58), S(58), 4096)
    p('v_add_u32', V(2), S(58), V(2))
    p('ds_write_b128', V(2), V(12, 4))
    p('ds_write_b128', V(2), V(16, 4), mods='offset:16')
    p.wait(lgkm=0)
    p('s_barrier')
    p('s_bitcmp1_b32', S(sWV), 0)
    p('s_cbranch_scc0', f'{pre}_end')
    p('s_sub_u32', S(58), S(sWV), 1)
    p('s_lshl_b32', S(58), S(58), 10)
    p('s_add_u32', S(58), S(58), 4096)
    p('v_add_u32', V(2), S(58), V(11))
    reduce(V(2), 8)
    p('s_add_u32', S(54), S(sLB), S(sCSB))
    p('s_lshl_b32', S(54), S(54), 8)
    p('s_add_u32', S(54), S(54), WS_CS)
    p('buffer_store_dword', V(12), V(11), S(sWC, 4), S(54), mods='offen sc1')
    signal(128)
    p.label(f'{pre}_end')
    p.add(stamp_flush(0, 2, sWV))
    p('s_endpgm')
    autowait(p.ins)
    return p.ins

def load_kernargs(p):
    p('s_load_dwordx16', S(4, 16), S(0, 2), 0)
    p('s_load_dwordx4', S(20, 4), S(0, 2), 64)
```

```python
from common import *
from k0 import load_kernargs

NSLOT = 10
SLOT = 16384
NT = ' nt' if flag('NT', 0) else ''
import math, struct
_c = 2.0 * math.sqrt(2.0 / math.pi) * LOG2E
GA = -_c
GB = -_c * 0.044715
BIGOFF = 0x40000000
CNT = 10

sDB, sWSP = 8, 16
sX, sWA, sWB, sWS = 24, 28, 32, 36
sWAVE, sM0B, sOFFW = 40, 41, 44
sCOL = 45
sST = 48
sST1 = 51
sCSP, sCSC, sTSC = 54, 55, 56
sTSP = 57
sCURX, sCURW = 58, 59
sT = 60
sRB, sCB, sMI, sNI, sTT0 = 68, 69, 70, 71, 72
sRHO = 73
sONES = 74
sSC = 78
sPOLL = 100
sSPIN = 101
vXF = 0
vACC = [64, 128]
vWF = 192
vTR = 208
vDW = 214
vL16 = 218
vCSO = 219
vTOK = 220
vA = 226
vB = 228
vLD = 236
vTMP = 246
vVS, vVT, vC4, vAT, vPL, vPO = (vTMP + k for k in range(4, 10))
vXA = 128
vXD = 140
MF = 'v_mfma_f32_32x32x16_bf16'
MF8 = 'v_mfma_f32_32x32x8_bf16'

def xreg(ks, j):
    return ('v', vXF + (ks * 2 + j) * 4) if ks < 8 else ('a', ((ks - 8) * 2 + j) * 4)
def xfrag(ks, j):
    f, r = xreg(ks, j)
    return R(f, r, 4)

def item_of(kind, s):
    if kind == 'x': return 2 * s
    return 2 * s + 1 if s < 10 else 10 + s

def dma_chunks(idx, gu):
    slot = idx % NSLOT
    ch = [[] for _ in range(4)]
    ch[0].append(I('s_add_u32', 'm0', S(sM0B), slot * SLOT))
    if idx < 20 and idx % 2 == 0:
        for q in range(4):
            ch[q].append(I('buffer_load_dwordx4', V(vXD + q), S(sX, 4), S(sCURX), mods=f'offen offset:{q*1024}{NT} lds', tag=('it', idx)))
        ch[3].append(I('s_add_u32', S(sCURX), S(sCURX), 128))
        ch[3].append(I('s_cmp_eq_u32', S(sCURX), 1280))
        ch[3].append(I('s_cselect_b32', S(sCURX), 0, S(sCURX)))
    else:
        s = (idx - 1) // 2 if idx < 20 else idx - 10
        pas, ks = divmod(s, 10)
        stride = 3456 if gu else 3840
        ch[0].insert(0, I('s_add_u32', S(sOFFW), S(sCOL + pas), S(sCURW)))
        for q in range(4):
            srdr = sWB if (gu and q >= 2) else sWA
            ch[q].append(I('buffer_load_dwordx4', V(vDW + q), S(srdr, 4), S(sOFFW), mods=f'offen offset:{q*1024}{NT} lds', tag=('it', idx)))
        ch[1].append(I('s_add_u32', S(sCURW), S(sCURW), 64 * stride))
        ch[2].append(I('s_cmp_eq_u32', S(sCURW), 640 * stride))
        ch[2].append(I('s_cselect_b32', S(sCURW), 0, S(sCURW)))
    return ch
def dma_item(idx, gu):
    return [i for c in dma_chunks(idx, gu) for i in c]

def w_reads(kappa):
    s, k4 = divmod(kappa, 4)
    slot = item_of('w', s) % NSLOT
    out = []
    buf = kappa & 1
    for u in range(2):
        for jj in range(2):
            off = slot * SLOT + k4 * 4096 + jj * 512
            b, o = divmod(off, 65536)
            out.append(I('ds_read_b64_tr_b16', V(vWF + buf * 8 + u * 4 + jj * 2, 2), V(vTR + b * 2 + u), mods=f'offset:{o}'))
    return out

def x_reads(kappa):
    s, k4 = divmod(kappa, 4)
    slot = item_of('x', s) % NSLOT
    out = []
    for j in range(2):
        off = slot * SLOT + j * 4096
        b, o = divmod(off, 65536)
        out.append(I('ds_read_b128', xfrag(kappa, j), V(vXA + b * 4 + k4), mods=f'offset:{o}'))
    return out

def mfmas(kappa, vmode):
    pas, ks = divmod(kappa, 40)
    acc = vACC[pas & 1]
    buf = kappa & 1
    out = []
    for u in range(2):
        for j in range(2):
            d = V(acc + (u * 2 + j) * 16, 16)
            w = V(vWF + buf * 8 + u * 4, 4)
            x = xfrag(ks, j)
            c = 0 if ks == 0 else d
            if vmode: out.append(I(MF, d, x, w, c))
            else: out.append(I(MF, d, w, x, c))
    return out

STMODS = 'offen sc1'

def cs_loads(k):
    o = [I('s_add_u32', S(sT + 7), S(sCSC), k * 5120)]
    return o + [I('buffer_load_dword', V(vLD + 2 * k + c), V(vCSO), S(sWS, 4), S(sT + 7), mods=f'offen offset:{c*128} sc1') for c in range(2 if k else 10)]

def cs_apply(pas, vmode):
    L = lambda k: V(vLD + 2 * pas + k)
    o = []
    for a, b in (((0, 1),) if pas else ((0, 1), (2, 3), (4, 5), (6, 7), (8, 9), (0, 2), (4, 6), (0, 8), (0, 4))):
        o.append(I('v_add_f32', L(a), L(a), L(b)))
    o.append(I('v_and_b32', L(1), 0xffff0000, L(0)))
    o.append(I('v_sub_f32', L(0), L(0), L(1)))
    o.append(I('v_cvt_pk_bf16_f32', V(vA), L(1), L(0)))
    o.append(I('v_cvt_pk_bf16_f32', V(vA + 1), L(1), 0))
    acc = vACC[pas & 1]
    for u in range(2):
        for j in range(2):
            d = V(acc + (u * 2 + j) * 16, 16)
            b = V(vB + u * 4 + j * 2, 2)
            o.append(I(MF8, d, b, V(vA, 2), d) if vmode else I(MF8, d, V(vA, 2), b, d))
    return o

def tok_loads():
    t = V(vTMP)
    o = [I('v_and_b32', t, 511, V(vL16)), I('v_lshrrev_b32', t, 1, t), I('v_lshrrev_b32', V(vTMP + 1), 9, V(vL16)),
         I('v_mul_u32_u24', V(vTMP + 1), 1280, V(vTMP + 1)), I('v_add_u32', t, t, V(vTMP + 1))]
    for c in range(5):
        o.append(I('buffer_load_dwordx2', V(vA + 2 * c, 2), t, S(sWS, 4), S(sTSC), mods=f'offen offset:{c*256} sc1'))
    return o

def tok_prep(gu):
    L = lambda k: V(vA + k)
    T = lambda k: V(vTMP + k)
    o = []
    for a, b in ((0, 2), (1, 3), (4, 6), (5, 7), (0, 8), (1, 9), (0, 4), (1, 5)):
        o.append(I('v_add_f32', L(a), L(a), L(b)))
    o.append(I('v_mul_f32', L(0), -1.0 / 640, L(0)))
    o.append(I('v_mul_f32', L(1), 1.0 / 640, L(1)))
    o.append(I('v_fma_f32', L(1), '-' + L(0), L(0), L(1)))
    o.append(I('v_and_b32', T(0), 0xffff0000, L(0)))
    o.append(I('v_max_f32', L(1), 0, L(1)))
    o.append(I('v_sub_f32', T(1), L(0), T(0)))
    o.append(I('v_add_f32', L(1), 1e-5, L(1)))
    o.append(I('v_cvt_pk_bf16_f32', T(0), T(0), T(0)))
    o.append(I('v_rsq_f32', L(1), L(1)))
    o.append(I('v_cvt_pk_bf16_f32', T(1), T(1), 0))
    for r in range(2):
        lo0, lo1, hi0, hi1 = (V(vB + k * 2 + r) for k in range(4))
        o.append(I('v_mov_b32', lo0, T(r))); o.append(I('v_mov_b32', lo1, 0))
        o.append(I('v_mov_b32', hi0, 0)); o.append(I('v_mov_b32', hi1, T(r)))
    r = L(1)
    if gu:
        o.append(I('v_mul_f32', V(vTOK + 2), r, r))
        o.append(I('v_mul_f32', V(vTOK + 1), GB, r))
        o.append(I('v_mul_f32', V(vTOK), GA, r))
        o.append(I('v_mul_f32', V(vTOK + 1), V(vTOK + 1), V(vTOK + 2)))
        o.append(I('v_rcp_f32', V(vTOK + 2), V(vTOK + 2)))
        ks = (0, 1, 2)
    else:
        o.append(I('v_mov_b32', V(vTOK), r))
        ks = (0,)
    for r in range(2):
        o.append(I('v_permlane32_swap_b32', V(vB + r), V(vB + 2 + r)))
        o.append(I('v_permlane32_swap_b32', V(vB + 4 + r), V(vB + 6 + r)))
    for k in ks: o.append(I('v_mov_b32', V(vTOK + 3 + k), V(vTOK + k)))
    o.append(I('s_nop', 0))
    for k in ks: o.append(I('v_permlane32_swap_b32', V(vTOK + k), V(vTOK + 3 + k)))
    return o

def st_base(pas, u): return S((sST1 if u else sST) + pas)

def epi_gu_tile(pas, u, j):
    acc = vACC[pas & 1]
    t = acc + (u * 2 + j) * 16
    cA, cB, cI = V(vTOK + j * 3), V(vTOK + j * 3 + 1), V(vTOK + j * 3 + 2)
    out = []
    for grp in range(2):
        rs = [grp * 4 + k for k in range(4)]
        T = [V(vTMP + k) for k in range(4)]
        for k, r in enumerate(rs): out.append(I('v_mul_f32', T[k], V(t + r), V(t + r)))
        for k, r in enumerate(rs): out.append(I('v_fma_f32', T[k], T[k], cB, cA))
        for k, r in enumerate(rs): out.append(I('v_mul_f32', T[k], T[k], V(t + r)))
        for k, r in enumerate(rs):
            out.append(I('v_exp_f32', T[k], T[k]))
            out.append(I('v_mul_f32', V(t + r), V(t + r), V(t + 8 + r)))
        for k, r in enumerate(rs): out.append(I('v_fma_f32', T[k], T[k], cI, cI))
        for k, r in enumerate(rs): out.append(I('v_rcp_f32', T[k], T[k]))
        for k, r in enumerate(rs): out.append(I('v_mul_f32', V(t + r), V(t + r), T[k]))
        out.append(I('v_cvt_pk_bf16_f32', V(t + 8 + grp * 2), V(t + rs[0]), V(t + rs[1])))
        out.append(I('v_cvt_pk_bf16_f32', V(t + 8 + grp * 2 + 1), V(t + rs[2]), V(t + rs[3])))
    st = sT + (u * 2 + j)
    out.append(I('s_add_u32', S(st), st_base(pas, u), j * H_TT))
    out.append(I('buffer_store_dwordx4', V(t + 8, 4), V(vL16), S(sWS, 4), S(st), mods=STMODS))
    return out

def epi_qk_tile(pas, u, j):
    acc = vACC[pas & 1]
    t = acc + (u * 2 + j) * 16
    c = V(vTOK + j * 3 + 1)
    out = []
    for half in range(2):
        b = t + half * 8
        for r in range(8): out.append(I('v_mul_f32', V(b + r), V(b + r), c))
        for r in range(4): out.append(I('v_cvt_pk_bf16_f32', V(b + r), V(b + 2 * r), V(b + 2 * r + 1)))
        st = sT + (j * 2 + half)
        out.append(I('s_add_u32', S(st), st_base(pas, u), j * QK_TT + half * 4096))
        out.append(I('buffer_store_dwordx4', V(b, 4), V(vL16), S(sWS, 4), S(st), mods=STMODS))
    return out

def epilogue_T(pas, gu):
    out = []
    if not gu:
        for j in range(2):
            out.append(I('v_mul_f32', V(vTOK + j * 3 + 1), S(sSC + pas), V(vTOK + j * 3)))
    tile = epi_gu_tile if gu else epi_qk_tile
    for u in range(2):
        for j in range(2): out += tile(pas, u, j)
    return out

def cost(f):
    if f.kind == 'mfma': return 12
    if f.kind == 'nop': return 4 * (int(f.ops[0]) + 1)
    return 8 if f.kind == 'trans' else (0 if f.kind in ('raw', 'label') else 4)

def gap(out, fixed, queues, budget):
    for f in fixed:
        out.append(f); budget -= cost(f)
    for q in queues:
        while q and budget > 0:
            if q[0].tag == 'space':
                q.pop(0); break
            c = cost(q[0])
            if c > budget + 3: break
            out.append(q.pop(0)); budget -= c

def waitfor(tags, lgkm=None):
    w = Inst('raw', ['']); w.waitfor = set(tags); w.prewait = [None, lgkm]; return w

def gen_path(p, gu, pre):
    modes = [False, False, False] if gu else [False, False, True]
    BUDS = [flag('K1BUD1', 16), flag('K1BUD2', 18), flag('K1BUD3', 16)]
    XF = flag('K1X', 0)
    INIT = flag('K1INIT', 4)
    PACE1, PACE2 = flag('K1PACE1', 2), flag('K1PACE2', 2)
    CSA = (vVS, vVT) if gu else (vTOK + 2, vTOK + 5)
    SIG = [flag('K1SIG', 3)]
    PI = [flag('K1PAI', 8), flag('K1PBI', 16), flag('K1PCI', 23)]
    PC = [flag('K1PAC', 10), flag('K1PBC', 18), flag('K1PCC', 25)]
    FS = [flag('K1FA', 12), flag('K1FB', 21), flag('K1FC', 27)]
    VSP = flag('K1VSP', 1)
    for idx in range(INIT):
        p.add(dma_item(idx, gu))
    lane = V(vLD)
    t0, t1 = V(vTMP + 2), V(vTMP + 3)
    if not gu:
        p('v_bfe_u32', t0, lane, 2, 1)
        p('v_lshlrev_b32', t0, 1, t0)
        p('v_bfe_u32', t1, lane, 3, 1)
        p('v_or_b32', t0, t0, t1)
        p('v_and_b32', t1, 3, lane)
        p('v_lshl_add_u32', t0, t0, 2, t1)
        p('v_bfe_u32', t1, lane, 4, 1)
        p('v_lshl_add_u32', t0, t1, 6, t0)
        p('v_lshrrev_b32', t1, 5, lane)
        p('v_lshlrev_b32', V(vVT), 4, t1)
        p('v_mul_u32_u24', t1, 10240, t1)
        p('v_lshl_add_u32', V(vVS), t0, 4, t1)
    p('s_mov_b32', S(sONES), 0x3f803f80)
    slow = Prog()
    def poll_issue(k):
        return [I('buffer_load_dword', V(vPO), V(vPL), S(sDB, 4), 0, mods=f'offen offset:{4*k} sc1')]
    def poll_read(k):
        if k: return [I('v_readfirstlane_b32', S(sPOLL), V(vPO))]
        return [I('v_readlane_b32', S(sPOLL), V(vPO), 0), I('v_readlane_b32', S(sSPIN), V(vPO), 1), I('s_min_u32', S(sPOLL), S(sPOLL), S(sSPIN))]
    def poll_check(k):
        L = f'{pre}_poll{k}'
        slow.label(L)
        slow('s_mov_b32', S(sT + 6), 1 << 14)
        slow.label(L + '_l')
        slow('s_sleep', 8)
        slow.add(poll_issue(k))
        slow('s_waitcnt', 'vmcnt(0)')
        slow.add(poll_read(k))
        slow('s_sub_u32', S(sT + 6), S(sT + 6), 1)
        slow('s_cbranch_scc1', L + '_d')
        slow('s_cmp_lt_u32', S(sPOLL), CNT)
        slow('s_cbranch_scc1', L + '_l')
        slow('s_branch', L + '_d')
        return poll_read(k) + [I('s_cmp_lt_u32', S(sPOLL), CNT), I('s_cbranch_scc1', L), Inst('label', [L + '_d'])]
    def cs_dots(ks, w, acc):
        return [I('v_dot2_f32_bf16', V(acc[r & 1]), V(w + r), S(sONES), V(acc[r & 1]) if (ks or r > 1) else 0) for r in range(4)]
    def cs_store(pas, acc):
        a, b = V(acc[0]), V(acc[1])
        return [I('v_add_f32', a, a, b), I('v_mov_b32', b, a), I('s_nop', 0),
                I('v_permlane32_swap_b32', a, b), I('v_add_f32', a, a, b),
                I('buffer_store_dword', a, V(vC4), S(sWSP, 4), S(sCSP), mods=STMODS, tag='part')]
    def tok_block():
        o = [I('s_cmp_eq_u32', S(sNI), 1), I('s_cbranch_scc1', 'k1_tok1')]
        for j in range(2):
            if j: o += [I('s_branch', 'k1_tokd'), Inst('label', ['k1_tok1'])]
            n = 0
            for ks in range(8):
                for r in range(4):
                    x = V(xreg(ks, j)[1] + r)
                    o.append(I('v_dot2_f32_bf16', V(vLD + (n & 1)), x, S(sONES), V(vLD + (n & 1)) if n > 1 else 0))
                    o.append(I('v_dot2_f32_bf16', V(vLD + 2 + (n & 1)), x, x, V(vLD + 2 + (n & 1)) if n > 1 else 0))
                    n += 1
        o += [Inst('label', ['k1_tokd']), I('s_nop', 2)]
        o += [I('v_add_f32', V(vLD), V(vLD), V(vLD + 1)), I('v_add_f32', V(vLD + 2), V(vLD + 2), V(vLD + 3)),
              I('v_lshrrev_b32', V(vLD + 1), 7, V(vL16)), I('v_and_b32', V(vLD + 1), 4, V(vLD + 1)),
              I('v_permlane32_swap_b32', V(vLD), V(vLD + 2)), I('v_lshl_add_u32', V(vLD + 1), V(vC4), 1, V(vLD + 1)),
              I('v_add_f32', V(vLD), V(vLD), V(vLD + 2)),
              I('buffer_store_dword', V(vLD), V(vLD + 1), S(sWS, 4), S(sTSP), mods=STMODS, tag='part')]
        return o
    def signal(k):
        return [I('v_lshrrev_b32', V(vPO), 4, V(vL16)), I('v_add_u32', V(vPO), 1, V(vPO)),
                I('buffer_atomic_add', V(vPO), V(vAT), S(sDB, 4), 0, mods='offen sc1')]
    p.wait_tag(('it', 0), ('it', 1))
    p('s_barrier')
    p.add(stampc(1) if flag('PROFC') else stamp(1))
    p.add(w_reads(0)[:2] + x_reads(0) + w_reads(0)[2:] + x_reads(1))
    fill = []; fill2 = []; vq = []; nextfill = []
    pend = list(range(INIT, NSLOT))
    M = vACC[1]
    dq = []
    credit = [0.0]
    def stage_dma(s):
        nonlocal pend
        pend.sort()
        for f in pend:
            if not (XF & 2 and f >= 20): dq.extend((f, c) for c in dma_chunks(f, gu))
        pend = []
    stage_dma(0)
    lastv = [-9]
    bar_at = {(4 * s - 2 if s < 10 else 4 * s - 1): s for s in range(1, 30)}
    for kappa in range(120):
        pas, ks = divmod(kappa, 40)
        out = []
        nxt = kappa + 1
        post = []
        if kappa in bar_at:
            s = bar_at[kappa]
            need = {item_of('w', s)} | ({item_of('x', s)} if s < 10 else set())
            assert not any(f in need for f, c in dq), ('dma late', s)
            if s == 2 and not gu: out += [waitfor([], 0)] + tok_block()
            if s in PC: out += poll_check(PC.index(s))
            tags = {('it', item_of('w', s))} | ({('it', item_of('x', s))} if s < 10 else set())
            if s in SIG: tags.add('part')
            out.append(waitfor(tags, 0))
            out.append(I('s_barrier'))
            PST = flag('PROFST')
            if PST and PST <= s < PST + 15:
                out += [I('s_memrealtime', S(98, 2)), I('s_waitcnt', 'lgkmcnt(0)'), I('s_mov_b32', S(81 + s - PST), S(98))]
            if s < 10: freed = [item_of('x', s - 1)] + ([item_of('w', s - 2)] if s >= 2 else [])
            elif s == 10: freed = [item_of('x', 9), item_of('w', 8), item_of('w', 9)]
            else: freed = [item_of('w', s - 1)]
            pend += [f + NSLOT for f in freed if f + NSLOT < 40]
            if s in SIG: post += signal(SIG.index(s))
            if s in PI: post += poll_issue(PI.index(s))
            if s in PC:
                cur = []
                for x in (tok_loads() if s == PC[0] else []) + cs_loads(PC.index(s)):
                    cur.append(x)
                    if x.kind == 'vmem':
                        if not XF & 512: vq.append(cur)
                        cur = []
            stage_dma(s)
            if s == FS[0]: fill += tok_prep(gu) + cs_apply(0, False) + epilogue_T(0, gu)
            if s in FS: assert not vq
            if s == FS[1]:
                fill2 += cs_apply(1, False)
                nextfill = epilogue_T(1, gu)
                if not gu:
                    for j in range(2):
                        for r in range(16):
                            nextfill.append(I('ds_bpermute_b32', V(M + j * 16 + r), V(vVT), V(vTOK + j * 3), mods=f'offset:{32*(r>>2)+4*(r&3)}'))
                    for r in range(4): nextfill.append(I('v_mov_b32', V(M + 32 + r), -1))
                    nextfill += [I('s_mul_i32', S(sTSP), S(sRB), 5), I('s_add_u32', S(sTSP), S(sTSP), S(sCB)), I('s_lshl_b32', S(sTSP), S(sTSP), 15),
                                 I('s_lshl_b32', S(sT + 5), S(sWAVE), 13), I('s_add_u32', S(sTSP), S(sTSP), S(sT + 5)), I('s_add_u32', S(sTSP), S(sTSP), WS_OF)]
                    for k in range(8):
                        if k == 4: nextfill.append(I('s_add_u32', S(sTSP), S(sTSP), 4096))
                        nextfill.append(I('buffer_store_dwordx4', V(M + 32, 4), V(vL16), S(sWS, 4), S(sTSP), mods=f'offen offset:{(k&3)*1024} sc1'))
                        nextfill += [Inst('raw', [''], tag='space') for _ in range(flag('K1MSP', 4))]
            if s == FS[2]: fill2 += cs_apply(2, modes[2])
        if XF & 1: fill = [f for f in fill if f.kind == 'vmem' and 'load' in f.op or f.kind == 'salu']
        if XF & 32: fill = [f for f in fill if not (f.kind == 'vmem' and 'store' in f.op)]
        if XF & 64: fill = [f for f in fill if f.kind != 'trans']
        if XF & 128: fill = [f for f in fill if f.kind != 'valu']
        mm = mfmas(kappa, modes[pas])
        wr = w_reads(nxt) if nxt < 120 else []
        xr = x_reads(kappa + 2) if kappa + 2 < 40 else []
        fx = [wr[0:2], wr[2:4], xr[0:1], xr[1:2]]
        if kappa < 4:
            d = cs_dots(ks, vWF + (kappa & 1) * 8, CSA)
            fx[2] = fx[2] + d[:2]; fx[3] = fx[3] + d[2:]
        if kappa == 4: fx[2] = fx[2] + cs_store(pas, CSA)
        for g in range(4):
            out.append(mm[g])
            fixed = list(fx[g])
            gi = kappa * 4 + g
            credit[0] = min(credit[0] + (PACE1 if kappa < 34 else PACE2) / 4.0 * (2 if kappa < 2 else 1), 2.0)
            if g == 0: fixed = fixed + post; post = []
            if vq and gi - lastv[0] >= VSP:
                fixed += vq.pop(0); lastv[0] = gi
                if VSP > 1 or XF & 1024: credit[0] -= 1.0
            elif dq and credit[0] >= 1.0:
                fixed += dq.pop(0)[1]; credit[0] -= 1.0
            if nextfill and not fill2 and kappa >= 80:
                fill += nextfill; nextfill = []
            gap(out, fixed, [fill2, fill], BUDS[pas])
        p.add(out)
        if flag('PROFC'):
            if ks == 39: p.add(stampc(2 + pas))
            if kappa == 19: p.add(stampc(5))
        else:
            if ks == 39: p.add(stamp(2 + pas))
            if kappa == 19: p.add(stamp(5))
        if ks == 39 and (fill or (fill2 and pas == 2)):
            print(f'{pre}: pass {pas}: {len(fill)} fillers left over')
            p.add(fill); fill = []
            if pas == 2: p.add(fill2)

    assert not pend and not dq
    if gu:
        p.add(epilogue_T(2, gu))
    else:
        acc = vACC[0]
        for u in range(2):
            for j in range(2):
                t = acc + (u * 2 + j) * 16
                for g in range(2):
                    b = t + g * 8
                    for r in range(8): p('v_mul_f32', V(b + r), V(b + r), V(M + j * 16 + g * 8 + r))
                    for r in range(4): p('v_cvt_pk_bf16_f32', V(b + r), V(b + 2 * r), V(b + 2 * r + 1))
                    st = sT + (j * 2 + g)
                    p('s_add_u32', S(st), st_base(2, u), j * VT_TT + g * 20480)
                    p('buffer_store_dwordx4', V(b, 4), V(vVS), S(sWS, 4), S(st), mods=STMODS)
    p.add(stamp(8))
    p.add(stamp_flush(1, vTMP, sWAVE))
    p('s_endpgm')
    return slow

def side_job():
    p = Prog()
    sJ, sW_, sCBs, sHF, sSTR, sOUTO, sCNT = range(40, 47)
    sC = 48
    sA, sB_, sD = 24, 28, 32
    vLN, vOFF, vLA, vRA, vSO, vX = 1, 2, 3, 4, 5, 6
    vAC = 8
    vRD = 24
    vDAT = 88
    lane = V(vLN)
    p.label('k1_side')
    p('v_and_b32', lane, 63, V(0))
    p('v_lshrrev_b32', V(vX), 6, V(0))
    p('v_readfirstlane_b32', S(sW_), V(vX))
    p('s_sub_u32', S(sJ), S(2), 224)
    p('s_lshr_b32', S(sCBs), S(sJ), 1)
    p('s_and_b32', S(sHF), S(sJ), 1)
    p('s_waitcnt', 'lgkmcnt(0)')
    srd(p, sWS, 22, WS_SIZE)
    p('s_cmp_ge_u32', S(sJ), 28)
    p('s_cbranch_scc1', 'k1_side_f')
    if flag('SIDEDLY', 85): p('s_sleep', flag('SIDEDLY', 85))
    srd(p, sD, 20, 256)
    p('s_cmp_lt_u32', S(sCBs), 5)
    p('s_cbranch_scc1', 'k1_side_q')
    srd(p, sA, 12, 640 * 3456)
    srd(p, sB_, 14, 640 * 3456)
    p('s_mov_b32', S(sSTR), 3456)
    p('s_sub_u32', S(sC), S(sCBs), 5)
    p('s_mul_i32', S(sC), S(sC), 384)
    p('s_add_u32', S(sC + 1), S(sC), 128)
    p('s_add_u32', S(sC + 2), S(sC), 256)
    p('s_branch', 'k1_side_j')
    p.label('k1_side_q')
    srd(p, sA, 6, 640 * 3840)
    p('s_add_u32', S(sB_), S(6), 128)
    p('s_addc_u32', S(sB_ + 1), S(7), 0)
    p('s_mov_b32', S(sB_ + 2), 640 * 3840 - 128)
    p('s_mov_b32', S(sB_ + 3), 0x00020000)
    p('s_mov_b32', S(sSTR), 3840)
    p('s_lshl_b32', S(sC), S(sCBs), 9)
    p('s_add_u32', S(sC + 1), S(sC), 256)
    p('s_lshl_b32', S(sC + 2), S(sCBs), 8)
    p('s_add_u32', S(sC + 2), S(sC + 2), 2560)
    p.label('k1_side_j')
    p('s_mul_i32', S(sT), S(sHF), 320)
    p('s_mul_i32', S(sT + 1), S(sW_), 80)
    p('s_add_u32', S(sT), S(sT), S(sT + 1))
    p('v_lshrrev_b32', V(vX), 3, lane)
    p('v_add_u32', V(vX), S(sT), V(vX))
    p('v_mul_lo_u32', V(vX), V(vX), S(sSTR))
    p('v_and_b32', V(vOFF), 7, lane)
    p('v_lshl_add_u32', V(vOFF), V(vOFF), 4, V(vX))
    p('s_lshl_b32', S(sSTR), S(sSTR), 3)
    def load1(q, ph, i):
        q('buffer_load_dwordx4', V(vDAT + i * 4, 4), V(vOFF), S(sB_ if i & 1 else sA, 4), S(sC + ph), mods='offen')
        if i & 1: q('s_add_u32', S(sC + ph), S(sC + ph), S(sSTR))
    def loads(q, ph):
        for i in range(20): load1(q, ph, i)
    def accum(q, ph, refill):
        for i in range(20):
            m = i & 1
            for r in range(4):
                d = V(vDAT + i * 4 + r)
                for h in range(2):
                    a = V(vAC + m * 8 + r * 2 + h)
                    q('v_dot2_f32_bf16', a, d, S(sT + 2 + h), 0 if i < 2 else a)
            if refill and ph < 2: load1(q, ph + 1, i)
        for m in range(2):
            for h in range(2):
                q('ds_write_b128', V(vLA), V(vAC + m * 8 + h * 4, 4), mods=f'offset:{ph*16640 + m*8256 + h*16}')
        q.wait(lgkm=0)
        q('s_barrier')
    def reduce(q, ph):
        for k in range(2):
            for c in range(32):
                q('ds_read_b32', V(vRD + k * 32 + c), V(vRA), mods=f'offset:{ph*16640 + c*256 + k*128}')
        for k in range(2):
            n = 32
            while n > 1:
                n //= 2
                for c in range(n): q('v_add_f32', V(vRD + k * 32 + c), V(vRD + k * 32 + c), V(vRD + k * 32 + n + c))
            q('buffer_store_dword', V(vRD + k * 32), V(vSO), S(sWS, 4), S(sOUTO), mods=f'offen offset:{k*2560} sc1', tag='cs')
        q('s_add_u32', S(sOUTO), S(sOUTO), 5120)
    def signal(q, ph):
        q.wait_tag('cs')
        q('s_mov_b64', 'exec', 1)
        q('buffer_atomic_add', V(vX + 1), V(vX), S(sD, 4), 0, mods=f'offen offset:{4*ph} sc1')
        q('s_mov_b64', 'exec', -1)
    loads(p, 1)
    p('s_mov_b32', S(sT + 2), 0x00003f80)
    p('s_mov_b32', S(sT + 3), 0x3f800000)
    p('s_lshl_b32', S(sT), S(sW_), 11)
    p('v_lshlrev_b32', V(vLA), 5, lane)
    p('v_add_u32', V(vLA), S(sT), V(vLA))
    p('v_bfe_u32', V(vRA), lane, 4, 1)
    p('v_mul_u32_u24', V(vRA), 8256, V(vRA))
    p('v_lshrrev_b32', V(vX), 5, lane)
    p('v_lshl_add_u32', V(vRA), V(vX), 6, V(vRA))
    p('v_mul_u32_u24', V(vSO), 1280, V(vX))
    p('v_bfe_u32', V(vX), lane, 2, 1)
    p('v_lshl_add_u32', V(vRA), V(vX), 5, V(vRA))
    p('v_bfe_u32', V(vX), lane, 3, 1)
    p('v_lshl_add_u32', V(vRA), V(vX), 4, V(vRA))
    p('v_and_b32', V(vX), 3, lane)
    p('v_lshl_add_u32', V(vRA), V(vX), 2, V(vRA))
    p('v_and_b32', V(vX), 31, lane)
    p('v_lshl_add_u32', V(vSO), V(vX), 2, V(vSO))
    p('s_mul_i32', S(sOUTO), S(sCBs), 3 * 5120)
    p('s_add_u32', S(sOUTO), S(sOUTO), WS_CSP + 5120)
    p('s_lshl_b32', S(sT), S(sHF), 7)
    p('s_add_u32', S(sOUTO), S(sOUTO), S(sT))
    p('s_mul_i32', S(sCNT), S(sCBs), 12)
    p('s_add_u32', S(sCNT), S(sCNT), 64)
    p('v_mov_b32', V(vX), S(sCNT))
    p('v_mov_b32', V(vX + 1), 5)
    p('s_cmp_eq_u32', S(sW_), 0)
    p('s_cbranch_scc1', 'k1_side_w0')
    st = autowait(p.ins)
    o = Prog()
    for ph in (1, 2): accum(o, ph, True)
    o('s_branch', 'k1_side_m')
    autowait(o.ins, st.copy())
    z = Prog()
    z.label('k1_side_w0')
    z('s_setprio', 3)
    for ph in (1, 2):
        accum(z, ph, False)
        if ph == 1: z.add(stamp(1))
        reduce(z, ph)
        if ph < 2: loads(z, ph + 1)
        signal(z, ph); z.add(stamp(2 + ph))
    z('s_branch', 'k1_side_x')
    autowait(z.ins, st.copy())
    sU, sRA, sRB_, sBASE, sLB = range(52, 57)
    m = Prog()
    m.label('k1_side_f')
    m('s_sub_u32', S(sU), S(sJ), 28)
    m('s_lshl_b32', S(sU), S(sU), 2)
    m('s_add_u32', S(sU), S(sU), S(sW_))
    m('s_branch', 'k1_side_r')
    m.label('k1_side_m')
    m('s_add_u32', S(sU), S(sJ), 16)
    m('s_cmp_ge_u32', S(sU), 40)
    m('s_cbranch_scc1', 'k1_side_x')
    m('s_cmp_lg_u32', S(sW_), 1)
    m('s_cbranch_scc1', 'k1_side_x')
    m.label('k1_side_r')
    m('s_mul_i32', S(sLB), S(sW_), 20480)
    m('s_add_u32', S(sLB), S(sLB), 65536)
    vTA, vT0, vT1, vL = vRA, vSO, vX, vLA
    m('v_lshrrev_b32', V(vT0), 5, lane)
    m('v_bfe_u32', V(vT1), lane, 2, 2)
    m('v_lshl_add_u32', V(vT0), V(vT0), 3, V(vT1))
    m('v_mul_u32_u24', V(vT0), 1280, V(vT0))
    m('v_bfe_u32', V(vT1), lane, 4, 1)
    m('v_lshl_add_u32', V(vT0), V(vT1), 5, V(vT0))
    m('v_and_b32', V(vT1), 1, lane)
    m('v_lshl_add_u32', V(vT0), V(vT1), 4, V(vT0))
    m('v_bfe_u32', V(vT1), lane, 1, 1)
    m('v_lshl_add_u32', V(vT0), V(vT1), 3, V(vT0))
    m('v_add_u32', V(vTA), S(sLB), V(vT0))
    m('v_lshlrev_b32', V(vL), 4, lane)
    m('s_mov_b32', S(sRA), 4)
    m('s_mov_b32', S(sRB_), 0)
    srd(m, sA, 8, 640 * 1280)
    m('s_mul_i32', S(sBASE), S(sU), 20 * 1280)
    m('s_cmp_lt_u32', S(sU), 32)
    m('s_cbranch_scc1', 'k1_side_g')
    m('s_sub_u32', S(sT), S(sU), 32)
    m('s_mul_i32', S(sBASE), S(sT), 80 * 1280)
    m('s_mov_b32', S(sRA), 20)
    m('s_mov_b32', S(sRB_), 16)
    m.label('k1_side_g')
    body = Prog()
    for q in range(20):
        a, b_, c = V(vRD + 3 * (q & 3)), V(vRD + 3 * (q & 3) + 1), V(vRD + 3 * (q & 3) + 2)
        body('v_add_u32', a, 64 * q, lane)
        body('v_mul_u32_u24', b_, 3277, a)
        body('v_lshrrev_b32', b_, 18, b_)
        body('v_mul_u32_u24', c, 80, b_)
        body('v_sub_u32', a, a, c)
        body('v_lshrrev_b32', c, 2, b_)
        body('v_mul_u32_u24', c, S(sRA), c)
        body('v_and_b32', b_, 3, b_)
        body('v_add3_u32', b_, b_, c, S(sRB_))
        body('v_mul_u32_u24', b_, 1280, b_)
        body('v_lshl_add_u32', a, a, 4, b_)
        body('s_add_u32', 'm0', S(sLB), q * 1024)
        body('buffer_load_dwordx4', a, S(sA, 4), S(sBASE), mods='offen lds')
    body('s_mul_i32', S(sT), S(sU), 5120)
    body('s_add_u32', S(sT), S(sT), WS_WP)
    body.wait(vm=0)
    for ctg in range(20):
        for j2 in range(2):
            body('ds_read_b64_tr_b16', V(vDAT + 4 * ctg + 2 * j2, 2), V(vTA), mods=f'offset:{ctg*64 + j2*5120}')
    for ctg in range(20):
        cg, ct = divmod(ctg, 5)
        if ct == 4: body('s_add_u32', S(sT + 1), S(sT), 4096)
        body('buffer_store_dwordx4', V(vDAT + 4 * ctg, 4), V(vL), S(sWS, 4), S(sT + 1 if ct == 4 else sT), mods=f'offen offset:{(ct&3)*1024}' + (' sc1' if flag('SIDESC', 1) else ''))
        if ct == 4: body('s_add_u32', S(sT), S(sT), WP_CG)
    autowait(body.ins)
    m.add(body.ins)
    m.label('k1_side_x')
    m.add(stamp_flush(0, vX, sW_))
    r = Prog(); r.add(p.ins + o.ins + z.ins + m.ins)
    return r

def gen_k1():
    p = Prog()
    p('s_cmp_ge_u32', S(2), 256)
    p('s_cbranch_scc1', 'k1_exit')
    p.add(stamp_init())
    load_kernargs(p)
    p('s_cmp_ge_u32', S(2), 224)
    p('s_cbranch_scc1', 'k1_side')
    if flag('EPF', 1):
        p('s_getpc_b64', S(60, 2))
        p.label('k1_epf_pc')
        p('v_lshrrev_b32', V(1), 6, V(0))
        p('v_and_b32', V(2), 3, V(0))
        p('v_lshl_add_u32', V(1), V(1), 2, V(2))
        p('s_lshr_b32', S(62), S(2), 3)
        p('s_lshl_b32', S(62), S(62), 4)
        p('v_add_u32', V(1), S(62), V(1))
        p('v_lshlrev_b32', V(1), 7, V(1))
        p('v_min_u32', V(1), 'code_end-k1_epf_pc-4', V(1))
        p('global_load_dword', V(vPO), V(1), S(60, 2), tag='pf')
    lane = V(vLD)
    p('v_and_b32', lane, 63, V(0))
    p('v_lshrrev_b32', V(vTMP), 6, V(0))
    p('v_readfirstlane_b32', S(sWAVE), V(vTMP))
    p('s_and_b32', S(sT), S(2), 7)
    p('s_lshr_b32', S(sT + 1), S(2), 3)
    p('s_lshr_b32', S(sT + 2), S(sT), 1)
    p('s_mul_i32', S(sT + 2), S(sT + 2), 28)
    p('s_add_u32', S(sT + 2), S(sT + 2), S(sT + 1))
    p('s_lshr_b32', S(sCB), S(sT + 2), 3)
    p('s_and_b32', S(sRB), S(sT + 2), 7)
    p('s_and_b32', S(sT), S(sT), 1)
    p('s_add_u32', S(sT + 3), S(sCB), S(sT))
    p('s_lshl_b32', S(sT + 3), S(sT + 3), 1)
    p('s_add_u32', S(sT + 3), S(sT + 3), S(sRB))
    p('s_mul_i32', S(sT + 4), S(sT + 3), 6554)
    p('s_lshr_b32', S(sT + 4), S(sT + 4), 16)
    p('s_mul_i32', S(sT + 4), S(sT + 4), 10)
    p('s_sub_u32', S(sRHO), S(sT + 3), S(sT + 4))
    p('s_lshl_b32', S(sCURX), S(sRHO), 7)
    p('s_lshl_b32', S(sT), S(sT), 3)
    p('s_add_u32', S(sRB), S(sRB), S(sT))
    p('s_lshr_b32', S(sMI), S(sWAVE), 1)
    p('s_and_b32', S(sNI), S(sWAVE), 1)
    p('s_lshl_b32', S(sM0B), S(sWAVE), 12)
    p('s_lshl_b32', S(sTT0), S(sRB), 2)
    p('s_lshl_b32', S(sT), S(sMI), 1)
    p('s_add_u32', S(sTT0), S(sTT0), S(sT))
    t0, t1, t2, t3 = (V(vTMP), V(vTMP + 1), V(vTMP + 2), V(vTMP + 3))
    p('v_lshlrev_b32', V(vL16), 4, lane)
    p('s_lshl_b32', S(sT), S(sRB), 7)
    p('s_lshl_b32', S(sT + 1), S(sWAVE), 5)
    p('s_add_u32', S(sT), S(sT), S(sT + 1))
    p('v_lshrrev_b32', t0, 3, lane)
    p('v_add_u32', t0, S(sT), t0)
    p('v_mul_u32_u24', t0, 1280, t0)
    p('v_lshrrev_b32', t1, 4, lane)
    p('v_and_b32', t2, 7, lane)
    p('v_xor_b32', t1, t1, t2)
    p('v_lshl_add_u32', t0, t1, 4, t0)
    for q in range(4):
        if q & 1:
            p('v_xor_b32', V(vXD + q), 64, t0)
            p('v_add_u32', V(vXD + q), q * 8 * 1280 - q * 1024 + BIAS, V(vXD + q))
        else:
            p('v_add_u32', V(vXD + q), q * 8 * 1280 - q * 1024 + BIAS, t0)
    w0, w1 = V(vLD + 1), V(vLD + 2)
    p('v_bfe_u32', w0, lane, 1, 2)
    p('v_bfe_u32', w1, lane, 4, 1)
    p('v_xor_b32', w0, w0, w1)
    p('v_lshlrev_b32', w0, 5, w0)
    p('v_and_b32', w1, 1, lane)
    p('v_lshl_add_u32', w0, w1, 4, w0)
    p('v_lshrrev_b32', w1, 3, lane)
    p('s_lshl_b32', S(sT), S(sWAVE), 4)
    p('v_add_u32', w1, S(sT), w1)

    def late(p):
        p('v_and_b32', t0, 31, lane)
        p('v_lshlrev_b32', V(vC4), 2, t0)
        p('v_lshrrev_b32', t1, 1, t0)
        p('v_and_b32', t1, 7, t1)
        p('v_lshrrev_b32', t2, 5, lane)
        p('v_xor_b32', t3, S(sMI), t2)
        p('v_mul_u32_u24', t3, 1280, t3)
        p('v_add_u32', V(vCSO), V(vC4), t3)
        p('v_xor_b32', t1, t1, t2)
        p('v_lshlrev_b32', t1, 4, t1)
        p('v_lshl_add_u32', t0, t0, 7, t1)
        p('s_lshl_b32', S(sT), S(sMI), 13)
        p('v_add_u32', t0, S(sT), t0)
        for k4 in range(4):
            p('v_xor_b32', V(vXA + k4), k4 * 32, t0)
            for b in (1, 2):
                p('v_add_u32', V(vXA + b * 4 + k4), b * 65536, V(vXA + k4))
        p('v_lshrrev_b32', t0, 4, lane)
        p('v_and_b32', t0, 1, t0)
        p('v_lshrrev_b32', t1, 2, lane)
        p('v_and_b32', t1, 3, t1)
        p('v_lshrrev_b32', t2, 5, lane)
        p('v_lshl_add_u32', t2, t2, 3, t1)
        p('v_lshlrev_b32', t2, 7, t2)
        p('v_lshl_add_u32', t2, t0, 11, t2)
        p('v_lshrrev_b32', t1, 1, t1)
        p('v_lshl_add_u32', t1, t0, 1, t1)
        p('s_lshl_b32', S(sT), S(sNI), 1)
        p('s_add_u32', S(sT), S(sT), S(sMI))
        p('v_xor_b32', t1, S(sT), t1)
        p('v_lshl_add_u32', t2, t1, 5, t2)
        p('v_and_b32', t0, 1, lane)
        p('v_lshlrev_b32', t0, 1, t0)
        p('v_bfe_u32', t1, lane, 1, 1)
        p('v_or_b32', t3, t0, t1)
        p('v_lshl_add_u32', V(vTR), t3, 3, t2)
        p('v_xor_b32', V(vTR + 1), 32, V(vTR))
        for b in (1, 2):
            p('v_add_u32', V(vTR + 2 * b), b * 65536, V(vTR))
            p('v_add_u32', V(vTR + 2 * b + 1), b * 65536, V(vTR + 1))
        p('s_mul_i32', S(sT + 1), S(sCB), 12)
        p('s_add_u32', S(sT), S(sT), S(sT + 1))
        p('s_mul_i32', S(sCSP), S(sT), 1280)
        p('s_lshl_b32', S(sT + 2), S(sRHO), 7)
        p('s_add_u32', S(sCSP), S(sCSP), S(sT + 2))
        p('s_add_u32', S(sCSP), S(sCSP), WS_CSP)
        p('s_sub_u32', S(sT), S(sT), S(sMI))
        p('s_mul_i32', S(sCSC), S(sT), 1280)
        p('s_add_u32', S(sCSC), S(sCSC), WS_CSP)
        p('s_mul_i32', S(sTSC), S(sTT0), 1280)
        p('s_add_u32', S(sTSC), S(sTSC), WS_TSP)
        p('s_mul_i32', S(sT), S(sNI), 5)
        p('s_add_u32', S(sT), S(sT), S(sCB))
        p('s_lshl_b32', S(sT), S(sT), 8)
        p('s_add_u32', S(sTSP), S(sTSC), S(sT))
        srd(p, sWSP, 22, WS_SIZE)
        srd(p, sDB, 20, 256)
        p('s_sub_u32', S(sT), S(sRB), 8)
        p('s_cmp_lt_u32', S(sT), 6)
        p('s_cselect_b32', S(sWSP + 2), 0, WS_SIZE)
        p('s_mul_i32', S(sT + 1), S(sCB), 12)
        p('s_add_u32', S(sT + 1), S(sT + 1), 64)
        p('s_lshl_b32', S(sT + 2), S(sRB), 2)
        p('v_mov_b32', V(vPL), S(sT + 2))
        p('v_writelane_b32', V(vPL), S(sT + 1), 0)
        p('s_cmp_lt_u32', S(sT), 6)
        p('s_cselect_b32', S(sT + 1), BIGOFF, S(sT + 1))
        p('s_cmp_lt_u32', S(sCB), 5)
        p('s_cselect_b32', S(sT + 2), S(sT + 2), BIGOFF)
        p('s_cmp_eq_u32', S(sWAVE), 0)
        p('s_cselect_b32', S(sT + 1), S(sT + 1), BIGOFF)
        p('s_cselect_b32', S(sT + 2), S(sT + 2), BIGOFF)
        p('v_mov_b32', V(vAT), BIGOFF)
        p('v_writelane_b32', V(vAT), S(sT + 1), 0)
        p('v_writelane_b32', V(vAT), S(sT + 2), 1)

    p.wait(lgkm=0)
    srd(p, sX, 4, 2048 * 1280, BIAS)
    srd(p, sWS, 22, WS_SIZE)
    p('s_cmp_lt_u32', S(sCB), 5)
    p('s_cbranch_scc1', 'k1_qkv')
    def ubase(q, stride):
        pass
    p('s_mul_i32', S(sCURW), S(sRHO), 64 * 3456)
    srd(p, sWA, 12, 640 * 3456, BIAS)
    srd(p, sWB, 14, 640 * 3456, BIAS)
    st = 3456
    p('v_mul_u32_u24', w1, st, w1)
    p('v_add_u32', t2, w1, w0)
    p('v_add_u32', V(vDW), BIAS, t2)
    p('v_add_u32', V(vDW + 1), BIAS + 8 * st - 1024, t2)
    p('v_xor_b32', w0, 64, w0)
    p('v_add_u32', t2, w1, w0)
    p('v_add_u32', V(vDW + 2), BIAS - 2048, t2)
    p('v_add_u32', V(vDW + 3), BIAS + 8 * st - 3072, t2)
    p('s_sub_u32', S(sT), S(sCB), 5)
    p('s_mul_i32', S(sT), S(sT), 3 * 128)
    for pas in range(3): p('s_add_u32', S(sCOL + pas), S(sT), pas * 128)
    pg = Prog()
    def late_g(g):
        late(g)
        g('s_mul_i32', S(sT + 1), S(sTT0), H_TT)
        g('s_lshl_b32', S(sT + 2), S(sNI), 11)
        g('s_add_u32', S(sT + 1), S(sT + 1), S(sT + 2))
        g('s_add_u32', S(sT + 1), S(sT + 1), WS_H)
        g('s_lshl_b32', S(sT + 2), S(sMI), 10)
        g('s_xor_b32', S(sT + 4), S(sT + 2), 1024)
        for pas in range(3):
            g('s_lshl_b32', S(sT + 3), S(sCOL + pas), 5)
            g('s_add_u32', S(sT + 3), S(sT + 3), S(sT + 1))
            g('s_add_u32', S(sST + pas), S(sT + 3), S(sT + 2))
            g('s_add_u32', S(sST1 + pas), S(sT + 3), S(sT + 4))
    pq = Prog()
    pq.label('k1_qkv')
    q = pq
    q('s_mul_i32', S(sCURW), S(sRHO), 64 * 3840)
    srd(q, sWA, 6, 640 * 3840, BIAS)
    st = 3840
    q('v_mul_u32_u24', w1, st, w1)
    q('v_add_u32', t2, w1, w0)
    q('v_add_u32', V(vDW), BIAS, t2)
    q('v_add_u32', V(vDW + 1), BIAS + 8 * st - 1024, t2)
    q('v_xor_b32', w0, 64, w0)
    q('v_add_u32', t2, w1, w0)
    q('v_add_u32', V(vDW + 2), BIAS - 2048 + 128, t2)
    q('v_add_u32', V(vDW + 3), BIAS + 8 * st - 3072 + 128, t2)
    q('s_lshl_b32', S(sCOL), S(sCB), 9)
    q('s_add_u32', S(sCOL + 1), S(sCOL), 256)
    q('s_lshl_b32', S(sCOL + 2), S(sCB), 8)
    q('s_add_u32', S(sCOL + 2), S(sCOL + 2), 20 * 128)
    qs = struct.unpack('<I', struct.pack('<f', QSCALE))[0]
    def late_q(q):
        late(q)
        q('s_mul_i32', S(sT + 4), S(sTT0), QK_TT)
        q('s_lshl_b32', S(sT + 5), S(sNI), 11)
        q('s_add_u32', S(sT + 4), S(sT + 4), S(sT + 5))
        q('s_lshl_b32', S(sT + 2), S(sMI), 10)
        q('s_xor_b32', S(sT + 3), S(sT + 2), 1024)
        for pas in range(2):
            q('s_lshl_b32', S(sT + 5), S(sCOL + pas), 5)
            q('s_add_u32', S(sT + 5), S(sT + 5), S(sT + 4))
            q('s_add_u32', S(sST + pas), S(sT + 5), S(sT + 2))
            q('s_add_u32', S(sST1 + pas), S(sT + 5), S(sT + 3))
            q('s_cmp_lt_u32', S(sCOL + pas), 10 * 128)
            q('s_cselect_b32', S(sSC + pas), qs, 0x3f800000)
        q('s_mul_i32', S(sT + 4), S(sTT0), VT_TT)
        q('s_lshl_b32', S(sT + 5), S(sCB), 11)
        q('s_add_u32', S(sT + 4), S(sT + 4), S(sT + 5))
        q('s_lshl_b32', S(sT + 5), S(sNI), 9)
        q('s_add_u32', S(sT + 4), S(sT + 4), S(sT + 5))
        q('s_add_u32', S(sT + 4), S(sT + 4), WS_VT)
        q('s_lshl_b32', S(sT + 2), S(sMI), 8)
        q('s_xor_b32', S(sT + 3), S(sT + 2), 256)
        q('s_add_u32', S(sST + 2), S(sT + 4), S(sT + 2))
        q('s_add_u32', S(sST1 + 2), S(sT + 4), S(sT + 3))
    def path(pp, gu, pre, lt):
        tmp = Prog()
        slow = gen_path(tmp, gu, pre)
        k = max(i for i, x in enumerate(tmp.ins[:200]) if x.kind == 'vmem' and x.tag and x.tag[0] == 'it' and x.tag[1] == flag('K1INIT', 4) - 1)
        while tmp.ins[k + 1].kind == 'salu': k += 1
        l = Prog(); lt(l)
        pp.add(tmp.ins[:k + 1] + l.ins + tmp.ins[k + 1:])
        return slow
    slow_g = path(pg, True, 'gu', late_g)
    pq2 = Prog(); slow_q = path(pq2, False, 'qkv', late_q)
    st0 = autowait(p.ins)
    autowait(pg.ins, st0.copy())
    st1 = autowait(pq.ins, st0.copy())
    autowait(pq2.ins, st1)
    tail = side_job(); tail.label('k1_exit'); tail('s_endpgm')
    allins = p.ins + pg.ins + slow_g.ins + pq.ins + pq2.ins + slow_q.ins + tail.ins
    return kernel_head('k1_kernel') + finish(allins, True), kernel_desc('k1_kernel', 512, 256)
```

```python
from common import *
from k0 import load_kernargs

NBUF = flag('NBUF', 4)
BUF = 24576
VOFF = 12288
MISC = NBUF * BUF
LDS_ATT = MISC + 4096
B0 = 80.0
RCMASK = flag('RCMASK', 2)
sWS = 24
sWAVE, sHEAD, sQB, sTT = 28, 29, 30, 31
sDOFF, sDSTEP, sM0B = 32, 33, 34
sKH = 35
sMASK = 36
sCH, sRB, sWB = 42, 43, 44
sTGT = 45
sFLAG = 46
sH1 = 50
sT = 52
sSPIN = 60
sRC = 61
sP, sODD = 62, 63
vS = [0, 16]
vO = [32, 48]
vP = 64
vK1, vK2 = 72, 76
vG0 = [80, 84]
vG1 = 88
vQ1 = [92, 96]
vQ2 = [100, 102]
vAK1, vAK2, vAV = 104, 105, 106
vBK1, vBK2, vBV = 107, 108, 109
vD = 110
vNM = [113, 114]
vDL = [115, 116]
vCA, vCV, vONE = 117, 118, 119
vT = 120
vL16, vLANE = 128, 129
NV = 136
MF = 'v_mfma_f32_32x32x16_bf16'
MF8 = 'v_mfma_f32_32x32x8_bf16'

def rd_k(kt):
    t = kt % 4
    return [I('ds_read_b128', V(vK1, 4), V(vAK1), mods=f'offset:{t*1536}'),
            I('ds_read_b64', V(vK2, 2), V(vAK2), mods=f'offset:{t*1536}')]
def rd_g0(kt): return I('ds_read_b128', V(vG0[kt & 1], 4), V(vAV), mods=f'offset:{(kt%4)*1536}')
def rd_g1(kt): return I('ds_read_b128', V(vG1, 4), V(vAV), mods=f'offset:{(kt%4)*1536+768}')
def s_mfma(u):
    b = u & 1
    d = V(vS[b], 16)
    return [I(MF, d, V(vK1, 4), V(vQ1[b], 4), 0), I(MF8, d, V(vK2, 2), V(vQ2[b], 2), d)]
def pv0(u): return I(MF, V(vO[u & 1], 16), V(vG0[(u >> 1) & 1], 4), V(vP, 4), V(vO[u & 1], 16))
def pv1(u): return I(MF, V(vO[u & 1], 16), V(vG1, 4), V(vP + 4, 4), V(vO[u & 1], 16))

def dma_chunk(inloop=False):
    out = [I('s_add_u32', 'm0', S(sM0B), S(sWB))]
    if inloop:
        out.append(I('s_cmp_lt_u32', S(sCH), 9 - NBUF))
        out.append(I('s_cselect_b32', S(sDOFF), S(sDOFF), 0x40000000))
    for i in range(3):
        out.append(I('s_mov_b64', 'exec', S(sMASK + 2 * i, 2)))
        out.append(I('buffer_load_dwordx4', V(vD + i), S(sWS, 4), S(sDOFF), mods=f'offen offset:{i*1024} lds', tag='kv'))
    out.append(I('s_mov_b64', 'exec', -1))
    out.append(I('s_add_u32', S(sDOFF), S(sDOFF), S(sDSTEP)))
    out.append(I('s_add_u32', S(sWB), S(sWB), BUF))
    out.append(I('s_cmp_ge_u32', S(sWB), NBUF * BUF))
    out.append(I('s_cselect_b32', S(sWB), 0, S(sWB)))
    return out

def set_m(o, q, target_neg):
    o.append(I('v_and_b32', V(vNM[q]), 0xffff0000, target_neg))
    o.append(I('v_lshrrev_b32', V(vT + 7), 16, V(vNM[q])))
    o.append(I('v_cndmask_b32', V(vQ2[q]), V(vQ2[q]), V(vT + 7), S(sH1, 2)))

def recenter_code(q):
    r = []
    l = V(vO[q] + 8)
    r.append(I('v_mov_b32', V(vT), l))
    r.append(I('v_mov_b32', V(vT + 1), l))
    r.append(I('v_mov_b32', V(vT + 4), V(vNM[q])))
    r.append(I('v_permlane32_swap_b32', V(vT), V(vT + 1)))
    r.append(I('v_cmp_nge_f32', 'vcc', 2.0 ** 120, V(vT + 1)))
    r.append(I('v_log_f32', V(vT + 2), V(vT + 1)))
    r.append(I('s_or_b64', S(sFLAG + 2 * q, 2), S(sFLAG + 2 * q, 2), 'vcc'))
    r.append(I('v_sub_f32', V(vT + 3), V(vNM[q]), V(vT + 2)))
    r.append(I('v_add_f32', V(vT + 3), -B0, V(vT + 3)))
    r.append(I('v_rndne_f32', V(vT + 3), V(vT + 3)))
    set_m(r, q, V(vT + 3))
    r.append(I('v_sub_f32', V(vT + 4), V(vNM[q]), V(vT + 4)))
    r.append(I('v_cvt_i32_f32', V(vDL[q]), V(vT + 4)))
    return r

_lab = [0]
def cond_block(code):
    _lab[0] += 1
    L = f'k2_skip{_lab[0]}'
    return [I('s_bitcmp1_b32', S(sRC), S(sCH)), I('s_cbranch_scc0', L)] + code + [I('s_nop', 1), Inst('label', [L])]

def unit(t):
    b = t & 1
    s = vS[b]; sp = vS[b ^ 1]
    kt = t >> 1
    E = lambda r: I('v_exp_f32', V(s + r), V(s + r))
    C = lambda k: I('v_cvt_pk_bf16_f32', V(vP + k), V(s + 2 * k), V(s + 2 * k + 1))
    Cp = lambda k: I('v_cvt_pk_bf16_f32', V(vP + k), V(sp + 2 * k), V(sp + 2 * k + 1))
    sm = s_mfma(t + 1)
    out = []
    PR = flag('K2PRIO')
    if PR == 1 and t % 2 == 0: out.append(I('s_setprio', 3 - ((t + 2) % 8) // 2))
    out += [Cp(6), Cp(7), E(0), E(1), E(2), E(3)]
    if t in (6, 7):
        out += cond_block([I('s_nop', 3)] + [I('v_ldexp_f32', V(vO[b] + r), V(vO[b] + r), V(vDL[b])) for r in range(12)])
    if t in (5, 6):
        out += cond_block([I('s_nop', 4)] + recenter_code(b ^ 1))
    if b == 1:
        w = Inst('raw', ['']); w.waitfor = 'explicit'; w.prewait = [None, 0]; out.append(w)
    out += [sm[0], C(0), C(1), E(4), E(5)]
    if t == 5: out.append(I('v_readfirstlane_b32', S(sT), V(vCV)))
    out += [E(6), E(7), sm[1]]
    if t == 6:
        out.append(I('s_cmp_lt_u32', S(sT), S(sTGT)))
        out.append(I('s_cbranch_scc1', 'k2_spin'))
        out.append(Inst('label', ['k2_spin_done']))
        out.append(I('s_add_u32', S(sRB), S(sRB), BUF))
        out.append(I('s_cmp_ge_u32', S(sRB), NBUF * BUF))
        out.append(I('s_cselect_b32', S(sRB), 0, S(sRB)))
        out.append(I('s_add_u32', S(sTGT), S(sTGT), 8))
        out.append(I('v_add_u32', V(vAK1), S(sRB), V(vBK1)))
        out.append(I('v_add_u32', V(vAK2), S(sRB), V(vBK2)))
    out += [C(2), C(3), E(8), E(9), E(10), E(11), pv1(t - 1)]
    if b == 0:
        out += rd_k(kt + 1) + [rd_g1(kt)]
        if t == 6: out.append(I('v_add_u32', V(vAV), S(sRB), V(vBV)))
        out += [rd_g0(kt + 1)]
        if t == 2:
            w = Inst('raw', ['']); w.waitfor = 'explicit'; w.prewait = [3 * (NBUF - 3), None]; out.append(w)
            out.append(I('s_mov_b64', 'exec', 1))
            out.append(I('ds_add_u32', V(vCA), V(vONE)))
            out.append(I('s_mov_b64', 'exec', -1))
        if t == 4: out.append(I('ds_read_b32', V(vCV), V(vCA)))
        if t == 6: out += dma_chunk(True)
    out += [C(4), C(5), E(12), E(13), E(14), E(15), pv0(t)]
    return out

def att_prologue(p):
    lane = V(vLANE)
    t0, t1, t2, t3 = V(vT), V(vT + 1), V(vT + 2), V(vT + 3)
    p('s_lshr_b32', S(sKH), S(sWAVE), 2)
    p('s_and_b32', S(sT + 4), S(sWAVE), 3)
    p('s_lshl_b32', S(sTT), S(sQB), 3)
    p('s_lshl_b32', S(sT), S(sT + 4), 1)
    p('s_add_u32', S(sTT), S(sTT), S(sT))
    p('s_add_u32', S(sTT), S(sTT), S(sKH))
    p('s_mul_i32', S(sP), S(sHEAD), 5)
    p('s_lshr_b32', S(sP), S(sP), 1)
    p('s_and_b32', S(sODD), S(sHEAD), 1)
    p('s_mov_b32', S(sH1), 0)
    p('s_mov_b32', S(sH1 + 1), -1)
    p('s_mov_b64', S(sFLAG, 2), 0)
    p('s_mov_b64', S(sFLAG + 2, 2), 0)
    p('s_mov_b32', S(sRC), RCMASK)
    p('s_mul_i32', S(sM0B), S(sT + 4), 3072)
    p('s_lshr_b32', S(sT), S(sT + 4), 1)
    p('s_lshl_b32', S(sT), S(sT), 5)
    p('s_and_b32', S(sT + 1), S(sT + 4), 1)
    p('s_lshl_b32', S(sT + 1), S(sT + 1), 1)
    p('s_add_u32', S(sT + 6), S(sT), S(sT + 1))
    p('s_cmp_lt_u32', S(sWAVE), 4)
    p('s_cbranch_scc0', 'k2_kw')
    p('s_add_u32', S(sM0B), S(sM0B), VOFF)
    for i in range(3):
        p('v_add_u32', t0, 64 * i, lane)
        p('v_mul_u32_u24', t1, 2731, t0)
        p('v_lshrrev_b32', t1, 16, t1)
        p('v_mul_u32_u24', t2, 24, t1)
        p('v_sub_u32', t2, t0, t2)
        p('v_cmp_gt_u32', S(sMASK + 2 * i, 2), 20, t2)
        p('v_mul_u32_u24', t1, 10240, t1)
        p('v_lshl_add_u32', t1, t2, 4, t1)
        p('v_add_u32', V(vD + i), BIAS - 1024 * i, t1)
    p('s_mul_i32', S(sDOFF), S(sT + 6), VT_TT)
    p('s_mul_i32', S(sT + 5), S(sHEAD), 320)
    p('s_add_u32', S(sDOFF), S(sDOFF), S(sT + 5))
    p('s_add_u32', S(sDOFF), S(sDOFF), WS_VT)
    p('s_mov_b32', S(sDSTEP), 4 * VT_TT)
    p('s_branch', 'k2_dj')
    p.label('k2_kw')
    for i in range(3):
        p('v_add_u32', t0, 64 * i, lane)
        p('v_cmp_le_u32', 'vcc', 96, t0)
        p('v_lshlrev_b32', t1, 4, t0)
        p('v_add_u32', t2, QK_TT - 1536, t1)
        p('v_cndmask_b32', t1, t1, t2, 'vcc')
        p('v_add_u32', V(vD + i), BIAS - 1024 * i, t1)
        p('s_mov_b64', S(sMASK + 2 * i, 2), -1)
    p('s_mul_i32', S(sDOFF), S(sT + 6), QK_TT)
    p('s_add_u32', S(sT + 5), S(sP), 80)
    p('s_lshl_b32', S(sT + 5), S(sT + 5), 9)
    p('s_add_u32', S(sDOFF), S(sDOFF), S(sT + 5))
    p('s_mov_b32', S(sDSTEP), 4 * QK_TT)
    p.label('k2_dj')
    p.wait(lgkm=0)
    srd(p, sWS, 22, WS_VT + 64 * VT_TT, BIAS)
    p('s_mov_b32', S(sWB), 0)
    p('s_mov_b32', S(sRB), 0)
    p.add(dma_chunk())
    p('s_add_u32', S(sT + 5), S(sP), S(sODD))
    p('s_lshl_b32', S(sT + 5), S(sT + 5), 9)
    p('s_lshl_b32', S(sT + 6), S(sODD), 1)
    p('s_sub_u32', S(sT + 6), 2, S(sT + 6))
    p('s_lshl_b32', S(sT + 6), S(sT + 6), 9)
    p('s_lshl_b32', S(sT + 7), S(sODD), 3)
    p('s_add_u32', S(sT + 6), S(sT + 6), S(sT + 7))
    p('s_lshl_b32', S(sT + 7), S(sP), 9)
    p('s_add_u32', S(sT + 7), S(sT + 7), S(sT + 6))
    p('v_and_b32', t3, 511, V(vL16))
    for j in range(2):
        p('s_xor_b32', S(sT), S(sTT), j)
        p('s_mul_i32', S(sT), S(sT), QK_TT)
        p('s_add_u32', S(sT), S(sT), BIAS)
        p('s_add_u32', S(sT + 1), S(sT), S(sT + 5))
        p('s_add_u32', S(sT + 2), S(sT), S(sT + 7))
        p('buffer_load_dwordx4', V(vQ1[j], 4), V(vL16), S(sWS, 4), S(sT + 1), mods='offen')
        p('buffer_load_dwordx2', V(vQ2[j], 2), t3, S(sWS, 4), S(sT + 2), mods='offen')
    for c in range(1, NBUF - 1):
        p.add(dma_chunk())
    p('s_mul_i32', S(sT + 3), S(sKH), 6144)
    p('s_lshl_b32', S(sT + 4), S(sODD), 9)
    p('s_add_u32', S(sT + 4), S(sT + 4), S(sT + 3))
    p('v_add_u32', V(vBK1), S(sT + 4), V(vL16))
    p('v_add_u32', t0, S(sT + 6), t3)
    p('v_mov_b32', t1, VOFF + 320)
    p('v_cndmask_b32', t0, t0, t1, S(sH1, 2))
    p('v_add_u32', V(vBK2), S(sT + 3), t0)
    p('v_and_b32', t0, 31, lane)
    p('v_and_b32', t1, 3, t0)
    p('v_bfe_u32', t2, t0, 2, 1)
    p('v_lshl_add_u32', t1, t2, 3, t1)
    p('v_bfe_u32', t2, t0, 3, 1)
    p('v_lshl_add_u32', t1, t2, 2, t1)
    p('v_cmp_gt_u32', 'vcc', 16, t0)
    p('v_min_u32', t0, 23, t0)
    p('v_cndmask_b32', t1, t0, t1, 'vcc')
    p('v_lshrrev_b32', t2, 5, lane)
    p('v_mul_u32_u24', t2, 384, t2)
    p('v_lshl_add_u32', t1, t1, 4, t2)
    p('s_add_u32', S(sT + 3), S(sT + 3), VOFF)
    p('v_add_u32', V(vBV), S(sT + 3), t1)
    p('v_mov_b32', V(vAK1), V(vBK1)); p('v_mov_b32', V(vAK2), V(vBK2)); p('v_mov_b32', V(vAV), V(vBV))
    p('v_lshrrev_b32', t0, 7, V(0))
    p('v_mul_u32_u24', t0, BUF, t0)
    p('v_bfe_u32', t1, V(0), 2, 5)
    p('v_mul_u32_u24', t1, 384, t1)
    p('v_add_u32', t0, t0, t1)
    p('v_and_b32', t1, 3, V(0))
    p('v_lshl_add_u32', t0, t1, 4, t0)
    p('v_add_u32', t0, VOFF + 320, t0)
    p('v_cmp_eq_u32', 'vcc', 0, t1)
    p('v_mov_b32', t2, 0x3f803f80)
    p('v_cndmask_b32', V(vP), 0, t2, 'vcc')
    for r in range(1, 4): p('v_mov_b32', V(vP + r), V(vP))
    p('v_mov_b32', V(vCA), MISC)
    p('v_mov_b32', V(vONE), 1)
    p('v_mov_b32', V(vG1), 0)
    p('s_cmp_ge_u32', S(sWAVE), NBUF * 2)
    p('s_cbranch_scc1', 'k2_noones')
    p('ds_write_b128', t0, V(vP, 4))
    p.label('k2_noones')
    p('v_lshrrev_b32', t1, 2, V(vL16))
    p('v_add_u32', t1, MISC, t1)
    p('ds_write_b32', t1, V(vG1))
    for r in range(32): p('v_mov_b32', V(vO[0] + r), 0)
    for r in range(12, 16): p('v_mov_b32', V(vS[1] + r), 0)
    for r in range(4, 6): p('v_mov_b32', V(vP + r), 0)
    for r in range(1, 4): p('v_mov_b32', V(vG1 + r), 0)
    for j in range(2):
        for r in range(2): p('v_cndmask_b32', V(vQ2[j] + r), V(vQ2[j] + r), 0, S(sH1, 2))
    p('s_mov_b32', S(sTGT), 8)
    p('s_mov_b32', S(sCH), 0)
    p.wait(vm=3 * (NBUF - 2), lgkm=0)

def att_first(p):
    t0, t1 = V(vT), V(vT + 1)
    p.add(rd_k(0)); p.add([rd_g0(0)])
    sc = [vS[0], vT + 8 - 8]
    for q in range(2):
        d = V(vS[0], 16)
        p(MF, d, V(vK1, 4), V(vQ1[q], 4), 0)
        p(MF8, d, V(vK2, 2), V(vQ2[q], 2), d)
        s = vS[0]
        p('v_max3_f32', t0, V(s), V(s + 1), V(s + 2))
        p('v_max3_f32', t1, V(s + 3), V(s + 4), V(s + 5))
        p('v_max3_f32', t0, t0, V(s + 6), V(s + 7))
        p('v_max3_f32', t1, t1, V(s + 8), V(s + 9))
        p('v_max3_f32', t0, t0, V(s + 10), V(s + 11))
        p('v_max3_f32', t1, t1, V(s + 12), V(s + 13))
        p('v_max3_f32', t0, t0, V(s + 14), V(s + 15))
        p('v_max_f32', t0, t0, t1)
        p('v_mov_b32', t1, t0)
        p('v_permlane32_swap_b32', t0, t1)
        p('v_max_f32', t0, t0, t1)
        p('v_add_f32', t0, B0, t0)
        p('v_rndne_f32', t0, '-' + t0)
        l = []; set_m(l, q, t0); p.add(l)
    p.add(s_mfma(0))

def att_epilogue(e):
    t0, t1, t2, t3 = V(vT), V(vT + 1), V(vT + 2), V(vT + 3)
    for k in (6, 7): e('v_cvt_pk_bf16_f32', V(vP + k), V(vS[1] + 2 * k), V(vS[1] + 2 * k + 1))
    XB = (8 % NBUF) * BUF
    e('s_mul_i32', S(sT), S(sWAVE), 3072)
    e('s_add_u32', S(sT), S(sT), XB)
    e('v_add_u32', t0, S(sT), V(vL16))
    e.add([pv1(1)])
    e('s_xor_b32', S(sT + 1), S(sWAVE), 4)
    e('s_mul_i32', S(sT + 2), S(sT + 1), 3072)
    e('s_add_u32', S(sT + 2), S(sT + 2), XB)
    e('v_add_u32', t1, S(sT + 2), V(vL16))
    e('v_lshrrev_b32', t3, 2, V(vL16))
    e('s_lshl_b32', S(sT), S(sWAVE), 8)
    e('s_add_u32', S(sT), S(sT), MISC + 256)
    e('v_add_u32', t2, S(sT), t3)
    e('s_lshl_b32', S(sT), S(sT + 1), 8)
    e('s_add_u32', S(sT), S(sT), MISC + 256)
    e('v_add_u32', t3, S(sT), t3)
    e('ds_write_b32', t2, V(vNM[1]))
    e('v_mov_b32', V(vT + 4), 0x7f800000)
    e('v_cndmask_b32', V(vO[0] + 8), V(vO[0] + 8), V(vT + 4), S(sFLAG, 2))
    e('v_cndmask_b32', V(vO[1] + 8), V(vO[1] + 8), V(vT + 4), S(sFLAG + 2, 2))
    for a in range(3): e('ds_write_b128', t0, V(vO[1] + 4 * a, 4), mods=f'offset:{a*1024}')
    e('s_lshl_b32', S(sT), S(sWAVE), 2)
    e('s_add_u32', S(sT), S(sT), MISC + 64)
    e('v_mov_b32', V(vT + 5), S(sT))
    e('s_lshl_b32', S(sT), S(sT + 1), 2)
    e('s_add_u32', S(sT), S(sT), MISC + 64)
    e('v_mov_b32', V(vT + 6), S(sT))
    e('ds_write_b32', V(vT + 5), V(vONE))
    e('s_mov_b32', S(sSPIN), 1 << 20)
    e.label('k2_xw')
    e('ds_read_b32', V(vT + 7), V(vT + 6))
    e.wait(lgkm=0)
    e('v_readfirstlane_b32', S(sT), V(vT + 7))
    e('s_sub_u32', S(sSPIN), S(sSPIN), 1)
    e('s_cbranch_scc1', 'k2_xd')
    e('s_cmp_eq_u32', S(sT), 0)
    e('s_cbranch_scc1', 'k2_xw')
    e.label('k2_xd')
    X = vS[0]
    e('ds_read_b32', V(vT + 4), t3)
    for a in range(3): e('ds_read_b128', V(X + 4 * a, 4), t1, mods=f'offset:{a*1024}')
    e('v_min_f32', V(vT + 5), V(vNM[0]), V(vT + 4))
    e('v_sub_f32', V(vT + 6), V(vT + 5), V(vNM[0]))
    e('v_sub_f32', V(vT + 7), V(vT + 5), V(vT + 4))
    e('v_cvt_i32_f32', V(vT + 6), V(vT + 6))
    e('v_cvt_i32_f32', V(vT + 7), V(vT + 7))
    O = vO[0]
    for r in range(12): e('v_ldexp_f32', V(O + r), V(O + r), V(vT + 6))
    for r in range(12): e('v_ldexp_f32', V(X + r), V(X + r), V(vT + 7))
    for r in range(12): e('v_add_f32', V(O + r), V(O + r), V(X + r))
    e('v_mov_b32', t0, V(O + 8)); e('v_mov_b32', t1, V(O + 8))
    e('v_permlane32_swap_b32', t0, t1)

    e('v_rcp_f32', t0, t1)
    for r in range(12): e('v_mul_f32', V(O + r), V(O + r), t0)
    for r in range(6): e('v_cvt_pk_bf16_f32', V(O + r), V(O + 2 * r), V(O + 2 * r + 1))
    srd(e, sWS, 22, WS_SIZE)
    e('s_mul_i32', S(sT), S(sTT), OF_TT)
    e('s_add_u32', S(sT), S(sT), WS_OF)
    e('s_lshl_b32', S(sT + 1), S(sHEAD), 10)
    e('s_add_u32', S(sT + 1), S(sT + 1), S(sT))
    e('buffer_store_dwordx4', V(O, 4), V(vL16), S(sWS, 4), S(sT + 1), mods='offen sc1')
    e('s_lshr_b32', S(sT + 1), S(sHEAD), 1)
    e('s_lshl_b32', S(sT + 1), S(sT + 1), 9)
    e('s_lshl_b32', S(sT + 2), S(sODD), 3)
    e('s_add_u32', S(sT + 1), S(sT + 1), S(sT + 2))
    e('s_add_u32', S(sT + 1), S(sT + 1), S(sT))
    e('s_add_u32', S(sT + 1), S(sT + 1), 32768)
    e('s_not_b64', 'exec', S(sH1, 2))
    e('buffer_store_dwordx2', V(O + 4, 2), V(vL16), S(sWS, 4), S(sT + 1), mods='offen sc1')
    e('s_mov_b64', 'exec', -1)

def spin_code():
    sp = Prog()
    sp.label('k2_spin')
    sp('s_mov_b32', S(sSPIN), 1 << 20)
    sp.label('k2_spin_l')
    sp('ds_read_b32', V(vCV), V(vCA))
    sp('s_waitcnt', 'lgkmcnt(0)')
    sp('v_readfirstlane_b32', S(sT), V(vCV))
    sp('s_sub_u32', S(sSPIN), S(sSPIN), 1)
    sp('s_cbranch_scc1', 'k2_spin_done')
    sp('s_cmp_lt_u32', S(sT), S(sTGT))
    sp('s_cbranch_scc1', 'k2_spin_l')
    sp('s_branch', 'k2_spin_done')
    return sp

def gen_k2():
    p = Prog()
    p('s_cmp_ge_u32', S(2), 256)
    p('s_cbranch_scc1', 'k2_exit')
    p.add(stamp_init())
    load_kernargs(p)
    p('v_and_b32', V(vLANE), 63, V(0))
    p('v_lshrrev_b32', V(vT), 6, V(0))
    p('v_readfirstlane_b32', S(sWAVE), V(vT))
    p('v_lshlrev_b32', V(vL16), 4, V(vLANE))
    p('s_and_b32', S(sT), S(2), 7)
    p('s_lshl_b32', S(sT), S(sT), 2)
    p('s_bfe_u32', S(sT + 1), S(2), (2 << 16) | 3)
    p('s_add_u32', S(sHEAD), S(sT), S(sT + 1))
    p('s_lshr_b32', S(sQB), S(2), 5)
    att_prologue(p)
    p('s_barrier')
    p.add(stamp(1))
    att_first(p)
    p.add(stamp(2)); p.add(stampc(4))
    if PROF: p.wait(lgkm=0)
    p('s_nop', 9)
    body = Prog()
    body.label('k2_loop')
    for t in range(8): body.add(unit(t))
    body('s_add_u32', S(sCH), S(sCH), 1)
    body('s_cmp_lt_u32', S(sCH), 8)
    body('s_cbranch_scc1', 'k2_loop')
    e = Prog()
    e.add(stamp(3)); e.add(stampc(5))
    att_epilogue(e)
    e.add(stamp_flush(2, vT, sWAVE))
    e.label('k2_exit')
    e('s_endpgm')
    st = autowait(p.ins)
    st = autowait(body.ins, st)
    st = autowait(body.ins, st)
    autowait(e.ins, st)
    code = kernel_head('k2_kernel') + finish(p.ins + body.ins + e.ins + spin_code().ins, True)
    return code, kernel_desc('k2_kernel', NV, NV), f'; @launch kernel=k2_kernel grid=(256,1,1) block=(512,1,1) lds={LDS_ATT}'
```

```python
from common import *
from k0 import load_kernargs

NBUF = flag('NBUF', 4)
BUF = 24576
VOFF = 12288
MISC = NBUF * BUF
LDS_ATT = MISC + 4096
GRING = LDS_ATT
LDS_ALL = 163840
DONE = MISC + 4
B0 = 80.0
RCMASK = flag('RCMASK', 2)
sWS = 24
sWAVE, sHEAD, sQB, sTT = 28, 29, 30, 31
sDOFF, sDSTEP, sM0B = 32, 33, 34
sKH = 35
sMASK = 36
sCH, sRB, sWB = 42, 43, 44
sTGT = 45
sFLAG = 46
sH1 = 50
sT = 52
sSPIN = 60
sRC = 61
sP, sODD = 62, 63
vS = [0, 16]
vO = [32, 48]
vP = 64
vK1, vK2 = 72, 76
vG0 = [80, 84]
vG1 = 88
vQ1 = [92, 96]
vQ2 = [100, 102]
vAK1, vAK2, vAV = 104, 105, 106
vBK1, vBK2, vBV = 107, 108, 109
vD = 110
vNM = [113, 114]
vDL = [115, 116]
vCA, vCV, vONE = 117, 118, 119
vT = 120
vL16, vLANE = 128, 129
NV = 168
MF = 'v_mfma_f32_32x32x16_bf16'
MF8 = 'v_mfma_f32_32x32x8_bf16'

def rd_k(kt):
    t = kt % 4
    return [I('ds_read_b128', V(vK1, 4), V(vAK1), mods=f'offset:{t*1536}'),
            I('ds_read_b64', V(vK2, 2), V(vAK2), mods=f'offset:{t*1536}')]
def rd_g0(kt): return I('ds_read_b128', V(vG0[kt & 1], 4), V(vAV), mods=f'offset:{(kt%4)*1536}')
def rd_g1(kt): return I('ds_read_b128', V(vG1, 4), V(vAV), mods=f'offset:{(kt%4)*1536+768}')
def s_mfma(u):
    b = u & 1
    d = V(vS[b], 16)
    return [I(MF, d, V(vK1, 4), V(vQ1[b], 4), 0), I(MF8, d, V(vK2, 2), V(vQ2[b], 2), d)]
def pv0(u): return I(MF, V(vO[u & 1], 16), V(vG0[(u >> 1) & 1], 4), V(vP, 4), V(vO[u & 1], 16))
def pv1(u): return I(MF, V(vO[u & 1], 16), V(vG1, 4), V(vP + 4, 4), V(vO[u & 1], 16))

def dma_chunk(inloop=False):
    out = [I('s_add_u32', 'm0', S(sM0B), S(sWB))]
    if inloop:
        out.append(I('s_cmp_lt_u32', S(sCH), 9 - NBUF))
        out.append(I('s_cbranch_scc0', 'k2_nodma'))
    for i in range(3):
        out.append(I('s_mov_b64', 'exec', S(sMASK + 2 * i, 2)))
        out.append(I('buffer_load_dwordx4', V(vD + i), S(sWS, 4), S(sDOFF), mods=f'offen offset:{i*1024} lds', tag='kv'))
    out.append(I('s_mov_b64', 'exec', -1))
    out.append(I('s_add_u32', S(sDOFF), S(sDOFF), S(sDSTEP)))
    out.append(I('s_add_u32', S(sWB), S(sWB), BUF))
    out.append(I('s_cmp_ge_u32', S(sWB), NBUF * BUF))
    out.append(I('s_cselect_b32', S(sWB), 0, S(sWB)))
    if inloop: out.append(Inst('label', ['k2_nodma']))
    return out

def set_m(o, q, target_neg):
    o.append(I('v_and_b32', V(vNM[q]), 0xffff0000, target_neg))
    o.append(I('v_lshrrev_b32', V(vT + 7), 16, V(vNM[q])))
    o.append(I('v_cndmask_b32', V(vQ2[q]), V(vQ2[q]), V(vT + 7), S(sH1, 2)))

def recenter_code(q):
    r = []
    l = V(vO[q] + 8)
    r.append(I('v_mov_b32', V(vT), l))
    r.append(I('v_mov_b32', V(vT + 1), l))
    r.append(I('v_mov_b32', V(vT + 4), V(vNM[q])))
    r.append(I('v_permlane32_swap_b32', V(vT), V(vT + 1)))
    r.append(I('v_cmp_nge_f32', 'vcc', 2.0 ** 120, V(vT + 1)))
    r.append(I('v_log_f32', V(vT + 2), V(vT + 1)))
    r.append(I('s_or_b64', S(sFLAG + 2 * q, 2), S(sFLAG + 2 * q, 2), 'vcc'))
    r.append(I('v_sub_f32', V(vT + 3), V(vNM[q]), V(vT + 2)))
    r.append(I('v_add_f32', V(vT + 3), -B0, V(vT + 3)))
    r.append(I('v_rndne_f32', V(vT + 3), V(vT + 3)))
    set_m(r, q, V(vT + 3))
    r.append(I('v_sub_f32', V(vT + 4), V(vNM[q]), V(vT + 4)))
    r.append(I('v_cvt_i32_f32', V(vDL[q]), V(vT + 4)))
    return r

_lab = [0]
def cond_block(code):
    _lab[0] += 1
    L = f'k2_skip{_lab[0]}'
    return [I('s_bitcmp1_b32', S(sRC), S(sCH)), I('s_cbranch_scc0', L)] + code + [I('s_nop', 1), Inst('label', [L])]

def unit(t):
    b = t & 1
    s = vS[b]; sp = vS[b ^ 1]
    kt = t >> 1
    E = lambda r: I('v_exp_f32', V(s + r), V(s + r))
    C = lambda k: I('v_cvt_pk_bf16_f32', V(vP + k), V(s + 2 * k), V(s + 2 * k + 1))
    Cp = lambda k: I('v_cvt_pk_bf16_f32', V(vP + k), V(sp + 2 * k), V(sp + 2 * k + 1))
    sm = s_mfma(t + 1)
    out = []
    PR = flag('K2PRIO', 1)
    if PR == 1 and t % 2 == 0: out.append(I('s_setprio', 3 - ((t + 2) % 8) // 2))
    out += [Cp(6), Cp(7), E(0), E(1), E(2), E(3)]
    if t in (6, 7):
        out += cond_block([I('s_nop', 3)] + [I('v_ldexp_f32', V(vO[b] + r), V(vO[b] + r), V(vDL[b])) for r in range(12)])
    if t in (5, 6):
        out += cond_block([I('s_nop', 4)] + recenter_code(b ^ 1))
    if b == 1:
        w = Inst('raw', ['']); w.waitfor = 'explicit'; w.prewait = [None, 0]; out.append(w)
    out += [sm[0], C(0), C(1), E(4), E(5)]
    if t == 5: out.append(I('v_readfirstlane_b32', S(sT), V(vCV)))
    out += [E(6), E(7), sm[1]]
    if t == 6:
        out.append(I('s_cmp_lt_u32', S(sT), S(sTGT)))
        out.append(I('s_cbranch_scc1', 'k2_spin'))
        out.append(Inst('label', ['k2_spin_done']))
        out.append(I('s_add_u32', S(sRB), S(sRB), BUF))
        out.append(I('s_cmp_ge_u32', S(sRB), NBUF * BUF))
        out.append(I('s_cselect_b32', S(sRB), 0, S(sRB)))
        out.append(I('s_add_u32', S(sTGT), S(sTGT), 8))
        out.append(I('v_add_u32', V(vAK1), S(sRB), V(vBK1)))
        out.append(I('v_add_u32', V(vAK2), S(sRB), V(vBK2)))
    out += [C(2), C(3), E(8), E(9), E(10), E(11), pv1(t - 1)]
    if b == 0:
        out += rd_k(kt + 1) + [rd_g1(kt)]
        if t == 6: out.append(I('v_add_u32', V(vAV), S(sRB), V(vBV)))
        out += [rd_g0(kt + 1)]
        if t == 2:
            w = Inst('raw', ['']); w.waitfor = 'explicit'; w.prewait = [3 * (NBUF - 3), None]; out.append(w)
            out.append(I('s_cmp_lt_u32', S(sCH), 10 - NBUF))
            out.append(I('s_cbranch_scc1', 'k2_nodrain'))
            out.append(Inst('raw', ['  s_waitcnt vmcnt(0)']))
            out.append(Inst('label', ['k2_nodrain']))
            out.append(I('s_mov_b64', 'exec', 1))
            out.append(I('ds_add_u32', V(vCA), V(vONE)))
            out.append(I('s_mov_b64', 'exec', -1))
        if t == 4: out.append(I('ds_read_b32', V(vCV), V(vCA)))
        if t == 6: out += dma_chunk(True)
    out += [C(4), C(5), E(12), E(13), E(14), E(15), pv0(t)]
    return out

def att_prologue(p):
    lane = V(vLANE)
    t0, t1, t2, t3 = V(vT), V(vT + 1), V(vT + 2), V(vT + 3)
    p('s_lshr_b32', S(sKH), S(sWAVE), 2)
    p('s_and_b32', S(sT + 4), S(sWAVE), 3)
    p('s_lshl_b32', S(sTT), S(sQB), 3)
    p('s_lshl_b32', S(sT), S(sT + 4), 1)
    p('s_add_u32', S(sTT), S(sTT), S(sT))
    p('s_add_u32', S(sTT), S(sTT), S(sKH))
    p('s_mul_i32', S(sP), S(sHEAD), 5)
    p('s_lshr_b32', S(sP), S(sP), 1)
    p('s_and_b32', S(sODD), S(sHEAD), 1)
    p('s_mov_b32', S(sH1), 0)
    p('s_mov_b32', S(sH1 + 1), -1)
    p('s_mov_b64', S(sFLAG, 2), 0)
    p('s_mov_b64', S(sFLAG + 2, 2), 0)
    p('s_mov_b32', S(sRC), RCMASK)
    p('s_mul_i32', S(sM0B), S(sT + 4), 3072)
    p('s_lshr_b32', S(sT), S(sT + 4), 1)
    p('s_lshl_b32', S(sT), S(sT), 5)
    p('s_and_b32', S(sT + 1), S(sT + 4), 1)
    p('s_lshl_b32', S(sT + 1), S(sT + 1), 1)
    p('s_add_u32', S(sT + 6), S(sT), S(sT + 1))
    p('s_cmp_lt_u32', S(sWAVE), 4)
    p('s_cbranch_scc0', 'k2_kw')
    p('s_add_u32', S(sM0B), S(sM0B), VOFF)
    for i in range(3):
        p('v_add_u32', t0, 64 * i, lane)
        p('v_mul_u32_u24', t1, 2731, t0)
        p('v_lshrrev_b32', t1, 16, t1)
        p('v_mul_u32_u24', t2, 24, t1)
        p('v_sub_u32', t2, t0, t2)
        p('v_cmp_gt_u32', S(sMASK + 2 * i, 2), 20, t2)
        p('v_mul_u32_u24', t1, 10240, t1)
        p('v_lshl_add_u32', t1, t2, 4, t1)
        p('v_add_u32', V(vD + i), BIAS - 1024 * i, t1)
    p('s_mul_i32', S(sDOFF), S(sT + 6), VT_TT)
    p('s_mul_i32', S(sT + 5), S(sHEAD), 320)
    p('s_add_u32', S(sDOFF), S(sDOFF), S(sT + 5))
    p('s_add_u32', S(sDOFF), S(sDOFF), WS_VT)
    p('s_mov_b32', S(sDSTEP), 4 * VT_TT)
    p('s_branch', 'k2_dj')
    p.label('k2_kw')
    for i in range(3):
        p('v_add_u32', t0, 64 * i, lane)
        p('v_cmp_le_u32', 'vcc', 96, t0)
        p('v_lshlrev_b32', t1, 4, t0)
        p('v_add_u32', t2, QK_TT - 1536, t1)
        p('v_cndmask_b32', t1, t1, t2, 'vcc')
        p('v_add_u32', V(vD + i), BIAS - 1024 * i, t1)
        p('s_mov_b64', S(sMASK + 2 * i, 2), -1)
    p('s_mul_i32', S(sDOFF), S(sT + 6), QK_TT)
    p('s_add_u32', S(sT + 5), S(sP), 80)
    p('s_lshl_b32', S(sT + 5), S(sT + 5), 9)
    p('s_add_u32', S(sDOFF), S(sDOFF), S(sT + 5))
    p('s_mov_b32', S(sDSTEP), 4 * QK_TT)
    p.label('k2_dj')
    p.wait(lgkm=0)
    srd(p, sWS, 22, WS_VT + 64 * VT_TT, BIAS)
    p('s_mov_b32', S(sWB), 0)
    p('s_mov_b32', S(sRB), 0)
    p.add(dma_chunk())
    p('s_add_u32', S(sT + 5), S(sP), S(sODD))
    p('s_lshl_b32', S(sT + 5), S(sT + 5), 9)
    p('s_lshl_b32', S(sT + 6), S(sODD), 1)
    p('s_sub_u32', S(sT + 6), 2, S(sT + 6))
    p('s_lshl_b32', S(sT + 6), S(sT + 6), 9)
    p('s_lshl_b32', S(sT + 7), S(sODD), 3)
    p('s_add_u32', S(sT + 6), S(sT + 6), S(sT + 7))
    p('s_lshl_b32', S(sT + 7), S(sP), 9)
    p('s_add_u32', S(sT + 7), S(sT + 7), S(sT + 6))
    p('v_and_b32', t3, 511, V(vL16))
    for j in range(2):
        p('s_xor_b32', S(sT), S(sTT), j)
        p('s_mul_i32', S(sT), S(sT), QK_TT)
        p('s_add_u32', S(sT), S(sT), BIAS)
        p('s_add_u32', S(sT + 1), S(sT), S(sT + 5))
        p('s_add_u32', S(sT + 2), S(sT), S(sT + 7))
        p('buffer_load_dwordx4', V(vQ1[j], 4), V(vL16), S(sWS, 4), S(sT + 1), mods='offen')
        p('buffer_load_dwordx2', V(vQ2[j], 2), t3, S(sWS, 4), S(sT + 2), mods='offen')
    for c in range(1, NBUF - 1):
        p.add(dma_chunk())
    p('s_mul_i32', S(sT + 3), S(sKH), 6144)
    p('s_lshl_b32', S(sT + 4), S(sODD), 9)
    p('s_add_u32', S(sT + 4), S(sT + 4), S(sT + 3))
    p('v_add_u32', V(vBK1), S(sT + 4), V(vL16))
    p('v_add_u32', t0, S(sT + 6), t3)
    p('v_mov_b32', t1, VOFF + 320)
    p('v_cndmask_b32', t0, t0, t1, S(sH1, 2))
    p('v_add_u32', V(vBK2), S(sT + 3), t0)
    p('v_and_b32', t0, 31, lane)
    p('v_and_b32', t1, 3, t0)
    p('v_bfe_u32', t2, t0, 2, 1)
    p('v_lshl_add_u32', t1, t2, 3, t1)
    p('v_bfe_u32', t2, t0, 3, 1)
    p('v_lshl_add_u32', t1, t2, 2, t1)
    p('v_cmp_gt_u32', 'vcc', 16, t0)
    p('v_min_u32', t0, 23, t0)
    p('v_cndmask_b32', t1, t0, t1, 'vcc')
    p('v_lshrrev_b32', t2, 5, lane)
    p('v_mul_u32_u24', t2, 384, t2)
    p('v_lshl_add_u32', t1, t1, 4, t2)
    p('s_add_u32', S(sT + 3), S(sT + 3), VOFF)
    p('v_add_u32', V(vBV), S(sT + 3), t1)
    p('v_mov_b32', V(vAK1), V(vBK1)); p('v_mov_b32', V(vAK2), V(vBK2)); p('v_mov_b32', V(vAV), V(vBV))
    p('v_lshrrev_b32', t0, 7, V(0))
    p('v_mul_u32_u24', t0, BUF, t0)
    p('v_bfe_u32', t1, V(0), 2, 5)
    p('v_mul_u32_u24', t1, 384, t1)
    p('v_add_u32', t0, t0, t1)
    p('v_and_b32', t1, 3, V(0))
    p('v_lshl_add_u32', t0, t1, 4, t0)
    p('v_add_u32', t0, VOFF + 320, t0)
    p('v_cmp_eq_u32', 'vcc', 0, t1)
    p('v_mov_b32', t2, 0x3f803f80)
    p('v_cndmask_b32', V(vP), 0, t2, 'vcc')
    for r in range(1, 4): p('v_mov_b32', V(vP + r), V(vP))
    p('v_mov_b32', V(vCA), MISC)
    p('v_mov_b32', V(vONE), 1)
    p('v_mov_b32', V(vG1), 0)
    p('s_cmp_ge_u32', S(sWAVE), NBUF * 2)
    p('s_cbranch_scc1', 'k2_noones')
    p('ds_write_b128', t0, V(vP, 4))
    p.label('k2_noones')
    p('v_lshrrev_b32', t1, 2, V(vL16))
    p('v_add_u32', t1, MISC, t1)
    p('ds_write_b32', t1, V(vG1))
    for r in range(32): p('v_mov_b32', V(vO[0] + r), 0)
    for r in range(12, 16): p('v_mov_b32', V(vS[1] + r), 0)
    for r in range(4, 6): p('v_mov_b32', V(vP + r), 0)
    for r in range(1, 4): p('v_mov_b32', V(vG1 + r), 0)
    for j in range(2):
        for r in range(2): p('v_cndmask_b32', V(vQ2[j] + r), V(vQ2[j] + r), 0, S(sH1, 2))
    p('s_mov_b32', S(sTGT), 8)
    p('s_mov_b32', S(sCH), 0)
    p.wait(vm=3 * (NBUF - 2), lgkm=0)

def att_first(p):
    t0, t1 = V(vT), V(vT + 1)
    p.add(rd_k(0)); p.add([rd_g0(0)])
    sc = [vS[0], vT + 8 - 8]
    for q in range(2):
        d = V(vS[0], 16)
        p(MF, d, V(vK1, 4), V(vQ1[q], 4), 0)
        p(MF8, d, V(vK2, 2), V(vQ2[q], 2), d)
        s = vS[0]
        p('v_max3_f32', t0, V(s), V(s + 1), V(s + 2))
        p('v_max3_f32', t1, V(s + 3), V(s + 4), V(s + 5))
        p('v_max3_f32', t0, t0, V(s + 6), V(s + 7))
        p('v_max3_f32', t1, t1, V(s + 8), V(s + 9))
        p('v_max3_f32', t0, t0, V(s + 10), V(s + 11))
        p('v_max3_f32', t1, t1, V(s + 12), V(s + 13))
        p('v_max3_f32', t0, t0, V(s + 14), V(s + 15))
        p('v_max_f32', t0, t0, t1)
        p('v_mov_b32', t1, t0)
        p('v_permlane32_swap_b32', t0, t1)
        p('v_max_f32', t0, t0, t1)
        p('v_add_f32', t0, B0, t0)
        p('v_rndne_f32', t0, '-' + t0)
        l = []; set_m(l, q, t0); p.add(l)
    p.add(s_mfma(0))

def att_epilogue(e):
    t0, t1, t2, t3 = V(vT), V(vT + 1), V(vT + 2), V(vT + 3)
    for k in (6, 7): e('v_cvt_pk_bf16_f32', V(vP + k), V(vS[1] + 2 * k), V(vS[1] + 2 * k + 1))
    XB = (6 % NBUF) * BUF
    e('s_mul_i32', S(sT), S(sWAVE), 3072)
    e('s_add_u32', S(sT), S(sT), XB)
    e('v_add_u32', t0, S(sT), V(vL16))
    e.add([pv1(1)])
    e('s_xor_b32', S(sT + 1), S(sWAVE), 4)
    e('s_mul_i32', S(sT + 2), S(sT + 1), 3072)
    e('s_add_u32', S(sT + 2), S(sT + 2), XB)
    e('v_add_u32', t1, S(sT + 2), V(vL16))
    e('v_lshrrev_b32', t3, 2, V(vL16))
    e('s_lshl_b32', S(sT), S(sWAVE), 8)
    e('s_add_u32', S(sT), S(sT), MISC + 256)
    e('v_add_u32', t2, S(sT), t3)
    e('s_lshl_b32', S(sT), S(sT + 1), 8)
    e('s_add_u32', S(sT), S(sT), MISC + 256)
    e('v_add_u32', t3, S(sT), t3)
    e('ds_write_b32', t2, V(vNM[1]))
    e('v_mov_b32', V(vT + 4), 0x7f800000)
    e('v_cndmask_b32', V(vO[0] + 8), V(vO[0] + 8), V(vT + 4), S(sFLAG, 2))
    e('v_cndmask_b32', V(vO[1] + 8), V(vO[1] + 8), V(vT + 4), S(sFLAG + 2, 2))
    for a in range(3): e('ds_write_b128', t0, V(vO[1] + 4 * a, 4), mods=f'offset:{a*1024}')
    e('s_lshl_b32', S(sT), S(sWAVE), 2)
    e('s_add_u32', S(sT), S(sT), MISC + 64)
    e('v_mov_b32', V(vT + 5), S(sT))
    e('s_lshl_b32', S(sT), S(sT + 1), 2)
    e('s_add_u32', S(sT), S(sT), MISC + 64)
    e('v_mov_b32', V(vT + 6), S(sT))
    e('ds_write_b32', V(vT + 5), V(vONE))
    e('s_mov_b32', S(sSPIN), 1 << 20)
    e.label('k2_xw')
    e('ds_read_b32', V(vT + 7), V(vT + 6))
    e.wait(lgkm=0)
    e('v_readfirstlane_b32', S(sT), V(vT + 7))
    e('s_sub_u32', S(sSPIN), S(sSPIN), 1)
    e('s_cbranch_scc1', 'k2_xd')
    e('s_cmp_eq_u32', S(sT), 0)
    e('s_cbranch_scc1', 'k2_xw')
    e.label('k2_xd')
    X = vS[0]
    e('ds_read_b32', V(vT + 4), t3)
    for a in range(3): e('ds_read_b128', V(X + 4 * a, 4), t1, mods=f'offset:{a*1024}')
    e('v_min_f32', V(vT + 5), V(vNM[0]), V(vT + 4))
    e('v_sub_f32', V(vT + 6), V(vT + 5), V(vNM[0]))
    e('v_sub_f32', V(vT + 7), V(vT + 5), V(vT + 4))
    e('v_cvt_i32_f32', V(vT + 6), V(vT + 6))
    e('v_cvt_i32_f32', V(vT + 7), V(vT + 7))
    O = vO[0]
    for r in range(12): e('v_ldexp_f32', V(O + r), V(O + r), V(vT + 6))
    e.wait(lgkm=0)
    e('s_mov_b64', 'exec', 1)
    e('ds_add_u32', V(vCA), V(vONE), mods='offset:4')
    e('s_mov_b64', 'exec', -1)
    for r in range(12): e('v_ldexp_f32', V(X + r), V(X + r), V(vT + 7))
    for r in range(12): e('v_add_f32', V(O + r), V(O + r), V(X + r))
    e('v_mov_b32', t0, V(O + 8)); e('v_mov_b32', t1, V(O + 8))
    e('v_permlane32_swap_b32', t0, t1)

    e('v_rcp_f32', t0, t1)
    for r in range(12): e('v_mul_f32', V(O + r), V(O + r), t0)
    for r in range(6): e('v_cvt_pk_bf16_f32', V(O + r), V(O + 2 * r), V(O + 2 * r + 1))
    for r in range(6): e('v_min_u32', V(O + r), -2, V(O + r))
    srd(e, sWS, 22, WS_SIZE)
    e('s_mul_i32', S(sT), S(sTT), OF_TT)
    e('s_add_u32', S(sT), S(sT), WS_OF)
    e('s_lshl_b32', S(sT + 1), S(sHEAD), 10)
    e('s_add_u32', S(sT + 1), S(sT + 1), S(sT))
    e('buffer_store_dwordx4', V(O, 4), V(vL16), S(sWS, 4), S(sT + 1), mods='offen sc1')
    e('s_lshr_b32', S(sT + 1), S(sHEAD), 1)
    e('s_lshl_b32', S(sT + 1), S(sT + 1), 9)
    e('s_lshl_b32', S(sT + 2), S(sODD), 3)
    e('s_add_u32', S(sT + 1), S(sT + 1), S(sT + 2))
    e('s_add_u32', S(sT + 1), S(sT + 1), S(sT))
    e('s_add_u32', S(sT + 1), S(sT + 1), 32768)
    e('s_not_b64', 'exec', S(sH1, 2))
    e('buffer_store_dwordx2', V(O + 4, 2), V(vL16), S(sWS, 4), S(sT + 1), mods='offen sc1')
    e('s_mov_b64', 'exec', -1)

def spin_code():
    sp = Prog()
    sp.label('k2_spin')
    sp('s_mov_b32', S(sSPIN), 1 << 20)
    sp.label('k2_spin_l')
    sp('ds_read_b32', V(vCV), V(vCA))
    sp('s_waitcnt', 'lgkmcnt(0)')
    sp('v_readfirstlane_b32', S(sT), V(vCV))
    sp('s_sub_u32', S(sSPIN), S(sSPIN), 1)
    sp('s_cbranch_scc1', 'k2_spin_done')
    sp('s_cmp_lt_u32', S(sT), S(sTGT))
    sp('s_cbranch_scc1', 'k2_spin_l')
    sp('s_branch', 'k2_spin_done')
    return sp


DEPTH = 3
RING = 15360
SHARE = BUF // 2
gWS, gWD, gX, gOUT, gX4 = 24, 28, 36, 40, 8
WSLOT = 5120
HD = 6
gW, gTT, gCG, gM0B = 44, 45, 46, 47
gHO, gHB, gHE = 48, 49, 50
gWF, gWB_, gWE = 51, 52, 53
gOB, gTB, gSH, gOO = 54, 55, 56, 57
gVB, gVT = 58, 59
gT = 60
gRDY, gSPIN, gWV = 68, 69, 70
gCO = 71
uACC = 0
uDA = 160
uWF = 80
uAF = 120
uE9 = 160
uTB, uTR, uL16, uLANE = 164, 165, 166, 167
uT = 144
ORDER = [4, 0, 1, 2, 3]

def g_hload(n):
    return [I('buffer_load_dwordx4', V(uAF + (n % HD) * 4, 4), V(uL16), S(gWS, 4), S(gHO), mods='offen'),
            I('s_add_u32', S(gHO), S(gHO), 1024), I('s_cmp_eq_u32', S(gHO), S(gHE)), I('s_cselect_b32', S(gHO), S(gHB), S(gHO))]

def g_wdma(n):
    slot = n % DEPTH
    out = []
    for q in range(5):
        out.append(I('s_add_u32', 'm0', S(gM0B), slot * WSLOT + q * 1024))
        out.append(I('buffer_load_dwordx4', V(uDA + q), S(gWD, 4), S(gWF), mods='offen lds', tag=('w', n)))
    out += [I('s_add_u32', S(gWF), S(gWF), 16 * 1280), I('s_cmp_eq_u32', S(gWF), S(gWE)), I('s_cselect_b32', S(gWF), S(gWB_), S(gWF))]
    return out

def g_reads(n):
    slot = n % DEPTH; b = n & 1
    return [I('ds_read_b64_tr_b16', V(uWF + b * 20 + q * 4 + j2 * 2, 2), V(uTR), mods=f'offset:{slot*WSLOT + q*64 + j2*1280}')
            for q in range(5) for j2 in range(2)]

def g_mm(n):
    b = n & 1
    a = uAF + (n % HD) * 4
    return [I(MF, V(uACC + q * 16, 16), V(uWF + b * 20 + q * 4, 4), V(a, 4), 0 if n == 0 else V(uACC + q * 16, 16)) for q in range(5)]

def wo_place(q, i):
    if q == 0: return gM0B, uTR, i * 1024
    if q == 1: return gSH, uTB, i * 1024
    if q == 2: return gSH, uTB, 2 * BUF + i * 1024
    if i < 5: return gM0B, uTR, 10240 + i * 1024
    if i < 7: return gSH, uTB, 10240 + (i - 5) * 1024
    return gSH, uTB, 2 * BUF + 10240 + (i - 7) * 1024
def wo_reg(q, i): return uE9 if (q, i) == (3, 9) else uWF + 4 * i
def wo_src(q, i):
    return [I('s_add_u32', S(gT + 5), S(gVB if i < 8 else gVT), (i if i < 8 else i - 8) * 5120), I('s_add_u32', S(gT + 5), S(gT + 5), S(gCO + q))]
def wo_dma(q, i):
    if q == 4 or (q, i) == (3, 9):
        return wo_src(q, i) + [I('buffer_load_dwordx4', V(wo_reg(q, i), 4), V(uL16), S(gWS, 4), S(gT + 5), mods='offen')]
    base, _, off = wo_place(q, i)
    return [I('s_add_u32', 'm0', S(base), off)] + wo_src(q, i) + [I('buffer_load_dwordx4', V(uL16), S(gWS, 4), S(gT + 5), mods='offen lds', tag='wo')]
def wo_read(q, i):
    _, a, off = wo_place(q, i)
    return [I('ds_read_b128', V(wo_reg(q, i), 4), V(a), mods=f'offset:{off}')]

def lds_wait(name, off, target, sleep, pre=0):
    o = Prog()
    raw = lambda t: o.raw('  ' + t)
    tA, tB = V(uT + 6), V(uT + 7)
    o('v_mov_b32', tA, MISC + off)
    o('s_mov_b32', S(gSPIN), 1 << 18)
    if pre: o('s_sleep', pre)
    o('s_branch', name + 'e')
    o.label(name)
    o('s_sleep', sleep)
    o.label(name + 'e')
    o('ds_read_b32', tB, tA)
    raw('s_waitcnt lgkmcnt(0)')
    o('s_nop', 0)
    o('v_readfirstlane_b32', S(gT + 7), tB)
    o('s_sub_u32', S(gSPIN), S(gSPIN), 1)
    o('s_cbranch_scc1', name + 'd')
    o('s_cmp_lt_u32', S(gT + 7), target)
    o('s_cbranch_scc1', name)
    o.label(name + 'd')
    return o.ins

def o_poll():
    o = Prog()
    raw = lambda t: o.raw('  ' + t)
    o('s_mov_b32', S(gRDY), 0)
    o('s_mov_b32', S(gSPIN), 1 << 16)
    o.label('k2_op')
    for i in range(10):
        o('s_bitcmp1_b32', S(gRDY), i)
        o('s_cbranch_scc1', f'k2_ol{i}')
        o('s_add_u32', S(gT), S(gOB if i < 8 else gTB), (i if i < 8 else i - 8) * 1024)
        raw(f'buffer_load_dwordx4 {V(uAF + 4 * i, 4)}, {V(uL16)}, {S(gWS, 4)}, {S(gT)} offen sc1')
        o.label(f'k2_ol{i}')
    raw('s_waitcnt vmcnt(0)')
    tm = V(uLANE)
    for i in range(10):
        b = uAF + 4 * i
        o('v_max3_u32', tm, V(b), V(b + 1), V(b + 2))
        o('v_max_u32', tm, tm, V(b + 3))
        o('v_cmp_eq_u32', 'vcc', -1, tm)
        o('s_cmp_eq_u64', 'vcc', 0)
        o('s_cselect_b32', S(gT), 1 << i, 0)
        o('s_or_b32', S(gRDY), S(gRDY), S(gT))
    o('s_sub_u32', S(gSPIN), S(gSPIN), 1)
    o('s_cbranch_scc1', 'k2_od')
    o('s_cmp_lg_u32', S(gRDY), 1023)
    o('s_cbranch_scc1', 'k2_op')
    o.label('k2_od')
    return o.ins

def gemm_path():
    p = Prog()
    p.label('k2_gemm')
    lane = V(uLANE); t0, t1, t2, t3 = (V(uT + k) for k in range(4))
    p('v_and_b32', lane, 63, V(0))
    p('v_lshlrev_b32', V(uL16), 4, lane)
    p('s_sub_u32', S(gW), S(sWAVE), 8)
    p('s_mov_b32', S(gWV), S(gW))
    if flag('GPRIO', 0): p('s_setprio', flag('GPRIO', 0))
    p('s_and_b32', S(gT), S(2), 7)
    p('s_lshr_b32', S(gT + 1), S(2), 5)
    p('s_lshl_b32', S(gT + 2), S(gT + 1), 3)
    p('s_add_u32', S(gTT), S(gT), S(gT + 2))
    p('s_bfe_u32', S(gCG), S(2), (2 << 16) | 3)
    p('s_mul_i32', S(gM0B), S(gW), RING)
    p('s_add_u32', S(gM0B), S(gM0B), GRING)
    p('s_mul_i32', S(gSH), S(gW), SHARE)
    p('s_mul_i32', S(gT + 1), S(gT + 1), 27)
    p('s_lshr_b32', S(gT + 1), S(gT + 1), 3)
    if not flag('GROT', 1): p('s_mov_b32', S(gT + 1), 0)
    p('s_lshl_b32', S(gT + 2), S(gW), 2)
    p('s_add_u32', S(gT + 2), S(gT + 2), 4)
    for q in range(5):
        p('v_add_u32', t0, 64 * q, lane)
        p('v_mul_u32_u24', t1, 3277, t0)
        p('v_lshrrev_b32', t1, 16, t1)
        p('v_mul_u32_u24', t2, 20, t1)
        p('v_sub_u32', t2, t0, t2)
        p('v_add_u32', t3, S(gT + 2), t2)
        p('v_and_b32', t3, 15, t3)
        p('v_cmp_gt_u32', 'vcc', 16, t2)
        p('v_cndmask_b32', t2, t2, t3, 'vcc')
        p('v_mul_u32_u24', t3, 1280, t1)
        p('v_lshl_add_u32', V(uDA + q), t2, 4, t3)
    p('v_lshrrev_b32', t0, 5, lane)
    p('v_bfe_u32', t1, lane, 2, 2)
    p('v_lshl_add_u32', t0, t0, 3, t1)
    p('v_mul_u32_u24', t0, 320, t0)
    p('v_bfe_u32', t1, lane, 4, 1)
    p('v_lshl_add_u32', t0, t1, 5, t0)
    p('v_and_b32', t1, 1, lane)
    p('v_lshl_add_u32', t0, t1, 4, t0)
    p('v_bfe_u32', t1, lane, 1, 1)
    p('v_lshl_add_u32', t0, t1, 3, t0)
    p('v_add_u32', V(uTR), S(gM0B), t0)
    p('s_mul_i32', S(gT + 5), S(gCG), 320)
    p('s_mul_i32', S(gHB), S(gTT), H_TT)
    p('s_mul_i32', S(gT), S(gW), 27 * 1024)
    p('s_add_u32', S(gHB), S(gHB), S(gT))
    p('s_add_u32', S(gHB), S(gHB), WS_H)
    p('s_add_u32', S(gHE), S(gHB), 27 * 1024)
    p('s_lshl_b32', S(gT), S(gT + 1), 10)
    p('s_add_u32', S(gHO), S(gHB), S(gT))
    p('s_mul_i32', S(gT + 2), S(gCG), WP_CG)
    p('s_add_u32', S(gT + 2), S(gT + 2), WS_WP)
    p('s_mul_i32', S(gWB_), S(gW), 27 * 16 * 1280)
    p('s_add_u32', S(gWB_), S(gWB_), S(gT + 5))
    p('s_add_u32', S(gWE), S(gWB_), 27 * 16 * 1280)
    p('s_mul_i32', S(gT), S(gT + 1), 16 * 1280)
    p('s_add_u32', S(gWF), S(gWB_), S(gT))
    p('s_mul_i32', S(gVB), S(gW), 8 * 5120)
    p('s_add_u32', S(gVB), S(gVB), S(gT + 2))
    p('s_mul_i32', S(gVT), S(gW), 2 * 5120)
    p('s_add_u32', S(gVT), S(gVT), S(gT + 2))
    p('s_add_u32', S(gVT), S(gVT), 32 * 5120)
    for q in range(4):
        p('s_add_u32', S(gT + 1), S(gW), 1 + q)
        p('s_and_b32', S(gT + 1), S(gT + 1), 3)
        p('s_lshl_b32', S(gCO + q), S(gT + 1), 10)
    p('s_mov_b32', S(gCO + 4), 4096)
    p.wait(lgkm=0)
    srd(p, gWS, 22, WS_SIZE)
    srd(p, gWD, 16, 1728 * 1280)
    N = 27
    srd(p, gX, 4, 2048 * 1280)
    srd(p, gX4, 4, 2048 * 1280)
    p('s_cmp_eq_u32', S(gW), 0)
    p('s_cselect_b32', S(gX4 + 2), S(gX4 + 2), 0)
    srd(p, gOUT, 18, 2048 * 1280)
    p('s_mul_i32', S(gOB), S(gTT), OF_TT)
    p('s_add_u32', S(gOB), S(gOB), WS_OF)
    p('s_lshl_b32', S(gT), S(gW), 11)
    p('s_add_u32', S(gTB), S(gOB), S(gT))
    p('s_add_u32', S(gTB), S(gTB), 32768)
    p('s_lshl_b32', S(gT), S(gW), 13)
    p('s_add_u32', S(gOB), S(gOB), S(gT))
    p('s_mul_i32', S(gOO), S(gTT), 32 * 1280)
    p('s_add_u32', S(gOO), S(gOO), S(gT + 5))
    p('s_barrier')
    p.add(stamp(1))
    for n in range(DEPTH):
        p.add(g_hload(n)); p.add(g_wdma(n))
    for n in range(DEPTH, HD): p.add(g_hload(n))
    p.wait_tag(('w', 0))
    p.add(g_reads(0))
    for n in range(N):
        m = g_mm(n)
        seq = []
        w = Inst('raw', ['']); w.waitfor = 'explicit'; w.prewait = [None, 0]; seq.append(w)
        late = {24: [(0, i) for i in range(5)], 25: [(0, i) for i in range(5, 10)], 26: [(3, i) for i in range(5)]}
        iss = g_wdma(n + DEPTH) if n + DEPTH < N else [x for qi in late[n] for x in wo_dma(*qi)]
        seq += [m[0]] + iss
        if n + 1 < N:
            w = Inst('raw', ['']); w.waitfor = {('w', n + 1)}
            r = g_reads(n + 1)
            seq += [m[1], w] + r[:4] + [m[2]] + r[4:7] + [m[3]] + r[7:] + [m[4]]
        else:
            seq += m[1:]
        if n + HD < N: seq += g_hload(n + HD)
        p.add(seq)
    p.add(stamp(2))
    p('s_setprio', 3)
    for i in range(10): p.add(wo_dma(4, i))
    p.add(wo_dma(3, 9))
    p('v_add_u32', V(uTR), S(gM0B), V(uL16))
    p('v_add_u32', V(uTB), S(gSH), V(uL16))
    vXO = uT + 4
    p('v_and_b32', t0, 31, lane)
    p('v_mul_u32_u24', t0, 1280, t0)
    p('v_lshrrev_b32', t1, 5, lane)
    p('v_lshl_add_u32', V(vXO), t1, 4, t0)
    p('s_lshl_b32', S(gT + 2), S(gW), 6)
    p('s_add_u32', S(gT + 2), S(gT + 2), S(gOO))
    for k in range(2):
        p('buffer_load_dwordx4', V(uAF + 4 * k, 4), V(vXO), S(gX, 4), S(gT + 2), mods=f'offen offset:{32*k}')
        p('buffer_load_dwordx4', V(uAF + 8 + 4 * k, 4), V(vXO), S(gX4, 4), S(gOO), mods=f'offen offset:{256+32*k}')
    for k, q in ((0, 3), (1, 4)):
        for r in range(8):
            x = V(uAF + 8 * k + r)
            p('v_lshlrev_b32', t0, 16, x)
            p('v_and_b32', t1, 0xffff0000, x)
            p('v_add_f32', V(uACC + 16 * q + 2 * r), V(uACC + 16 * q + 2 * r), t0)
            p('v_add_f32', V(uACC + 16 * q + 2 * r + 1), V(uACC + 16 * q + 2 * r + 1), t1)
    p.add(lds_wait('k2_gw1', 0, 8 * (11 - NBUF), 16))
    for i in range(10): p.add(wo_dma(1, i))
    for i in (5, 6): p.add(wo_dma(3, i))
    p.add(lds_wait('k2_gw2', 0, 64, 8))
    p.add(stamp(8))
    p.add(lds_wait('k2_gw3', 4, 8, flag('GSL', 2), flag('GPRE', 16)))
    for i in range(10): p.add(wo_dma(2, i))
    for i in (7, 8): p.add(wo_dma(3, i))
    p.add(stamp(5))
    p.add(o_poll())
    p.add(stamp(3))
    vWA, vWB = uTR, uTB
    RES = {4: (vWA, 0), 0: (vWA, 4096), 1: (vWB, 0), 2: (vWB, 4096)}
    def res_write(q):
        a, off = RES[q]
        return [I('ds_write_b128', V(a), V(uACC + 16 * q + 4 * k, 4), mods=f'offset:{off + k*1024}') for k in range(4)]
    for c, q in enumerate(ORDER):
        nq = ORDER[c + 1] if c < 4 else None
        for i in range(10):
            p(MF, V(uACC + 16 * q, 16), V(wo_reg(q, i), 4), V(uAF + 4 * i, 4), V(uACC + 16 * q, 16))
            if nq is not None and (nq, i) != (3, 9): p.add(wo_read(nq, i))
            if c > 0 and i == 1: p.add(res_write(ORDER[c - 1]))
            if c == 3 and i == 4:
                R = uACC + 16 * 4
                p('v_mov_b32', V(R + 15), V(uL16))
                for k, (mul, add) in enumerate(((RING, GRING + 4096), (SHARE, 0), (SHARE, 4096))):
                    p('s_sub_u32', S(gT), S(gW), 1 + k)
                    p('s_and_b32', S(gT), S(gT), 3)
                    p('s_mul_i32', S(gT), S(gT), mul)
                    p('s_add_u32', S(gT), S(gT), add)
                    p('v_add_u32', V(R + 12 + k), S(gT), V(R + 15))
                p('s_lshl_b32', S(gT), S(gW), 10)
                p('s_add_u32', S(gT), S(gT), GRING)
                p('v_add_u32', V(R + 11), S(gT), V(R + 15))
                p('v_bfe_u32', V(R + 10), V(R + 15), 4, 5)
                p('v_mul_u32_u24', V(R + 10), 1280, V(R + 10))
                p('v_lshrrev_b32', V(R + 15), 9, V(R + 15))
                p('v_lshl_add_u32', V(R + 10), V(R + 15), 4, V(R + 10))
                p('s_lshl_b32', S(gT + 2), S(gW), 6)
                p('s_add_u32', S(gT + 2), S(gT + 2), S(gOO))
                p('s_lshr_b32', S(gT + 3), S(gW), 1)
                p('s_lshl_b32', S(gT + 3), S(gT + 3), 5)
                p('s_and_b32', S(gT + 4), S(gW), 1)
                p('s_lshl_b32', S(gT + 4), S(gT + 4), 3)
                p('s_add_u32', S(gT + 3), S(gT + 3), S(gT + 4))
                p('s_add_u32', S(gT + 3), S(gT + 3), S(gOO))
            if c == 4:
                R = uACC + 16 * 4
                Q = uWF
                if i == 3:
                    p.wait(lgkm=0)
                    p('s_barrier')
                if i == 4:
                    for w in range(4): p('ds_read_b128', V(Q + 4 * w, 4), V(R + 11), mods=f'offset:{w*RING}')
                    for k in range(3):
                        for a in range(4): p('ds_read_b128', V(uACC + 16 * k + 4 * a, 4), V(R + 12 + k), mods=f'offset:{a*1024}')
                if i == 6:
                    for r in range(4):
                        p('v_add_f32', V(Q + r), V(Q + r), V(Q + 4 + r)); p('v_add_f32', V(Q + 8 + r), V(Q + 8 + r), V(Q + 12 + r))
                if i == 7:
                    for r in range(4): p('v_add_f32', V(Q + r), V(Q + r), V(Q + 8 + r))
                    p('v_cvt_pk_bf16_f32', V(Q), V(Q), V(Q + 1))
                    p('v_cvt_pk_bf16_f32', V(Q + 1), V(Q + 2), V(Q + 3))
                    p('buffer_store_dwordx2', V(Q, 2), V(R + 10), S(gOUT, 4), S(gT + 3), mods='offen offset:256')
                if i == 8:
                    for r in range(16): p('v_add_f32', V(uACC + r), V(uACC + r), V(uACC + 16 + r))
                if i == 9:
                    for r in range(16): p('v_add_f32', V(uACC + r), V(uACC + r), V(uACC + 32 + r))
    p.add(stamp(4))
    for k in range(2):
        for r in range(8): p('v_add_f32', V(uACC + 8 * k + r), V(uACC + 8 * k + r), V(uACC + 48 + 8 * k + r))
        for r in range(4): p('v_cvt_pk_bf16_f32', V(uACC + 8 * k + r), V(uACC + 8 * k + 2 * r), V(uACC + 8 * k + 2 * r + 1))
        p('buffer_store_dwordx4', V(uACC + 8 * k, 4), V(uACC + 64 + 10), S(gOUT, 4), S(gT + 2), mods=f'offen offset:{32*k}')
    p.add(stamp_flush(3, uT, gWV))
    p('s_endpgm')
    return p

def gen_k2():
    p = Prog()
    p('s_cmp_ge_u32', S(2), 256)
    p('s_cbranch_scc1', 'k2_exit')
    p.add(stamp_init())
    load_kernargs(p)
    p('v_lshrrev_b32', V(vT), 6, V(0))
    p('v_readfirstlane_b32', S(sWAVE), V(vT))
    p('s_cmp_ge_u32', S(sWAVE), 8)
    p('s_cbranch_scc1', 'k2_gemm')
    st0 = autowait(p.ins)
    a = Prog()
    a('v_and_b32', V(vLANE), 63, V(0))
    a('v_lshlrev_b32', V(vL16), 4, V(vLANE))
    a('s_and_b32', S(sT), S(2), 7)
    a('s_lshl_b32', S(sT), S(sT), 2)
    a('s_bfe_u32', S(sT + 1), S(2), (2 << 16) | 3)
    a('s_add_u32', S(sHEAD), S(sT), S(sT + 1))
    a('s_lshr_b32', S(sQB), S(2), 5)
    att_prologue(a)
    a('s_barrier')
    a.add(stamp(1))
    att_first(a)
    a.add(stamp(2)); a.add(stampc(4))
    if PROF: a.wait(lgkm=0)
    a('s_nop', 9)
    body = Prog()
    body.label('k2_loop')
    for t in range(8): body.add(unit(t))
    body('s_add_u32', S(sCH), S(sCH), 1)
    body('s_cmp_lt_u32', S(sCH), 8)
    body('s_cbranch_scc1', 'k2_loop')
    e = Prog()
    e.add(stamp(3)); e.add(stampc(5))
    att_epilogue(e)
    e.add(stamp_flush(2, vT, sWAVE))
    e.label('k2_exit')
    e('s_endpgm')
    st = autowait(a.ins, st0.copy())
    st = autowait(body.ins, st)
    st = autowait(body.ins, st)
    autowait(e.ins, st)
    g = gemm_path()
    autowait(g.ins, st0.copy())
    code = kernel_head('k2_kernel') + finish(p.ins + a.ins + body.ins + e.ins + spin_code().ins + g.ins, True)
    return code, kernel_desc('k2_kernel', NV, NV), f'; @launch kernel=k2_kernel grid=(256,1,1) block=(768,1,1) lds={LDS_ALL}'
```

```python
from common import *
from k0 import load_kernargs

DEPTH = 3
WSLOT = 5120
sWS, sWD, sWO, sX, sOUT = 24, 28, 32, 36, 40
sWAVE, sTT, sCG, sM0B = 44, 45, 46, 47
sAOFF, sWOFF = 48, 49
sT = 50
vACC = 0
vAF = 80
vWF = 92
vDA = 132
vDT = 137
vTR = 142
vL16 = 143
vLANE = 144
vT = 145
vXR = 154
NV = 168
RED = 0

def steps_list():
    st = [('d', i) for i in range(27)] + [('o', i) for i in range(8)] + [('t', i) for i in range(2)]
    return st

def issue(n, st):
    kind, i = st
    slot = n % DEPTH
    out = []
    if kind == 'd':
        out.append(I('s_add_u32', S(sAOFF), S(sT + 0), i * 1024))
        out.append(I('s_add_u32', S(sWOFF), S(sT + 1), i * 16 * 1280))
        w = sWD; va = vDA
    elif kind == 'o':
        out.append(I('s_add_u32', S(sAOFF), S(sT + 2), i * 1024))
        out.append(I('s_add_u32', S(sWOFF), S(sT + 3), i * 20 * 1280))
        w = sWO; va = vDA
    else:
        out.append(I('s_add_u32', S(sAOFF), S(sT + 4), i * 1024))
        out.append(I('s_add_u32', S(sWOFF), S(sT + 3), i * 80 * 1280))
        w = sWO; va = vDT
    out.append(I('buffer_load_dwordx4', V(vAF + slot * 4, 4), V(vL16), S(sWS, 4), S(sAOFF), mods='offen' + ('' if kind == 'd' else ' sc1')))
    for q in range(5):
        out.append(I('s_add_u32', 'm0', S(sM0B), slot * WSLOT + q * 1024))
        out.append(I('buffer_load_dwordx4', V(va + q), S(w, 4), S(sWOFF), mods='offen lds', tag=('w', n)))
    return out

def reads(n):
    slot = n % DEPTH; b = n & 1
    out = []
    for ct in range(5):
        for j2 in range(2):
            out.append(I('ds_read_b64_tr_b16', V(vWF + b * 20 + ct * 4 + j2 * 2, 2), V(vTR), mods=f'offset:{slot*WSLOT + ct*64 + j2*1280}'))
    return out

def mm(n):
    slot = n % DEPTH; b = n & 1
    return [I('v_mfma_f32_32x32x16_bf16', V(vACC + ct * 16, 16), V(vWF + b * 20 + ct * 4, 4), V(vAF + slot * 4, 4), 0 if n == 0 else V(vACC + ct * 16, 16)) for ct in range(5)]

def gen_k3():
    p = Prog()
    p('s_cmp_ge_u32', S(2), 256)
    p('s_cbranch_scc1', 'k3_exit')
    p.add(stamp_init())
    load_kernargs(p)
    lane = V(vLANE); t0, t1, t2, t3 = (V(vT + k) for k in range(4))
    p('v_and_b32', lane, 63, V(0))
    p('v_lshrrev_b32', t0, 6, V(0))
    p('v_readfirstlane_b32', S(sWAVE), t0)
    p('v_lshlrev_b32', V(vL16), 4, lane)
    p('s_and_b32', S(sT), S(2), 7)
    p('s_lshr_b32', S(sT + 1), S(2), 5)
    p('s_lshl_b32', S(sT + 1), S(sT + 1), 3)
    p('s_add_u32', S(sTT), S(sT), S(sT + 1))
    p('s_bfe_u32', S(sCG), S(2), (2 << 16) | 3)
    p('s_mul_i32', S(sM0B), S(sWAVE), DEPTH * WSLOT)
    for q in range(5):
        p('v_add_u32', t0, 64 * q, lane)
        p('v_mul_u32_u24', t1, 3277, t0)
        p('v_lshrrev_b32', t1, 16, t1)
        p('v_mul_u32_u24', t2, 20, t1)
        p('v_sub_u32', t2, t0, t2)
        p('v_lshlrev_b32', t2, 4, t2)
        p('v_mul_u32_u24', t3, 1280, t1)
        p('v_add_u32', V(vDA + q), t3, t2)
        p('v_lshrrev_b32', t3, 2, t1)
        p('v_mul_u32_u24', t3, 20, t3)
        p('v_and_b32', t1, 3, t1)
        p('v_add3_u32', t3, t3, t1, 16)
        p('v_mul_u32_u24', t3, 1280, t3)
        p('v_add_u32', V(vDT + q), t3, t2)
    p('v_lshrrev_b32', t0, 5, lane)
    p('v_bfe_u32', t1, lane, 2, 2)
    p('v_lshl_add_u32', t0, t0, 3, t1)
    p('v_mul_u32_u24', t0, 320, t0)
    p('v_bfe_u32', t1, lane, 4, 1)
    p('v_lshl_add_u32', t0, t1, 5, t0)
    p('v_and_b32', t1, 1, lane)
    p('v_lshl_add_u32', t0, t1, 4, t0)
    p('v_bfe_u32', t1, lane, 1, 1)
    p('v_lshl_add_u32', t0, t1, 3, t0)
    p('v_add_u32', V(vTR), S(sM0B), t0)
    p.wait(lgkm=0)
    srd(p, sWS, 22, WS_SIZE)
    srd(p, sWD, 16, 1728 * 1280)
    srd(p, sWO, 8, 640 * 1280)
    srd(p, sX, 4, 2048 * 1280)
    srd(p, sOUT, 18, 2048 * 1280)
    p('s_mul_i32', S(sT + 5), S(sCG), 320)
    p('s_mul_i32', S(sT), S(sTT), H_TT)
    p('s_mul_i32', S(sT + 1), S(sWAVE), 27 * 1024)
    p('s_add_u32', S(sT), S(sT), S(sT + 1))
    p('s_add_u32', S(sT), S(sT), WS_H)
    p('s_mul_i32', S(sT + 1), S(sWAVE), 27 * 16 * 1280)
    p('s_add_u32', S(sT + 1), S(sT + 1), S(sT + 5))
    p('s_mul_i32', S(sT + 4), S(sTT), OF_TT)
    p('s_add_u32', S(sT + 4), S(sT + 4), WS_OF)
    p('s_lshl_b32', S(sT + 2), S(sWAVE), 13)
    p('s_add_u32', S(sT + 2), S(sT + 2), S(sT + 4))
    p('s_lshl_b32', S(sT + 3), S(sWAVE), 11)
    p('s_add_u32', S(sT + 4), S(sT + 4), S(sT + 3))
    p('s_add_u32', S(sT + 4), S(sT + 4), 32768)
    p('s_mul_i32', S(sT + 3), S(sWAVE), 160 * 1280)
    p('s_add_u32', S(sT + 3), S(sT + 3), S(sT + 5))
    st = steps_list(); N = len(st)
    for n in range(DEPTH - 1): p.add(issue(n, st[n]))
    p.wait_tag(('w', 0))
    p.add(stamp(1))
    p.add(reads(0))
    for n in range(N):
        m = mm(n)
        iss = issue(n + DEPTH - 1, st[n + DEPTH - 1]) if n + DEPTH - 1 < N else []
        seq = [m[0]] + iss[:7] + [m[1]] + iss[7:]
        if n + 1 < N:
            w = Inst('raw', ['']); w.waitfor = {('w', n + 1)}
            r = reads(n + 1)
            seq += [w] + r[:4] + [m[2]] + r[4:7] + [m[3]] + r[7:] + [m[4]]
        else:
            seq += m[2:]
        p.add(seq)
        if n == 12: p.add(stamp(2))
        if n == 26: p.add(stamp(3))
        if n == 36: p.add(stamp(4))
    vIA = vWF
    for it in range(5):
        p('s_mul_i32', S(sT), S(sWAVE), 320)
        p('s_add_u32', S(sT), S(sT), it * 64)
        p('v_add_u32', t0, S(sT), lane)
        p('v_mul_u32_u24', t1, 1639, t0)
        p('v_lshrrev_b32', t1, 16, t1)
        p('v_mul_u32_u24', t2, 40, t1)
        p('v_sub_u32', t2, t0, t2)
        p('v_mul_u32_u24', t3, 528, t2)
        p('v_lshl_add_u32', V(vIA + it), t1, 4, t3)
        p('v_mul_u32_u24', t3, 1280, t1)
        p('v_lshl_add_u32', V(vIA + 5 + it), t2, 3, t3)
    p('s_mul_i32', S(sT), S(sTT), 32 * 1280)
    p('s_add_u32', S(sT), S(sT), S(sT + 5))
    for it in range(5):
        p('buffer_load_dwordx2', V(vXR + 2 * it, 2), V(vIA + 5 + it), S(sX, 4), S(sT), mods='offen')
    p('s_barrier')
    p('v_lshrrev_b32', t0, 5, lane)
    p('v_mul_u32_u24', t0, 2 * 528, t0)
    p('v_and_b32', t1, 31, lane)
    p('v_lshl_add_u32', t0, t1, 4, t0)
    p('s_mul_i32', S(sT + 1), S(sWAVE), 21120)
    p('v_add_u32', t0, S(sT + 1), t0)
    for ct in range(5):
        for a in range(4):
            quad = 8 * ct + 4 * (a >> 1) + (a & 1)
            p('ds_write_b128', t0, V(vACC + ct * 16 + a * 4, 4), mods=f'offset:{quad*528}')
    p.wait(lgkm=0)
    p('s_barrier')
    for it in range(5):
        for w in range(4):
            p('ds_read_b128', V(vACC + it * 16 + w * 4, 4), V(vIA + it), mods=f'offset:{w*21120}')
    for it in range(5):
        b = vACC + it * 16
        for r in range(4):
            p('v_add_f32', V(b + r), V(b + r), V(b + 4 + r))
            p('v_add_f32', V(b + 8 + r), V(b + 8 + r), V(b + 12 + r))
        p('v_lshlrev_b32', V(b + 4), 16, V(vXR + 2 * it))
        p('v_and_b32', V(b + 5), 0xffff0000, V(vXR + 2 * it))
        p('v_lshlrev_b32', V(b + 6), 16, V(vXR + 2 * it + 1))
        p('v_and_b32', V(b + 7), 0xffff0000, V(vXR + 2 * it + 1))
        for r in range(4):
            p('v_add_f32', V(b + r), V(b + r), V(b + 8 + r))
        for r in range(4):
            p('v_add_f32', V(b + r), V(b + r), V(b + 4 + r))
        p('v_cvt_pk_bf16_f32', V(b), V(b), V(b + 1))
        p('v_cvt_pk_bf16_f32', V(b + 1), V(b + 2), V(b + 3))
        p('buffer_store_dwordx2', V(b, 2), V(vIA + 5 + it), S(sOUT, 4), S(sT), mods='offen')
    p.add(stamp_flush(3, vT, sWAVE))
    p.label('k3_exit')
    p('s_endpgm')
    autowait(p.ins)
    code = kernel_head('k3_kernel') + finish(p.ins, True)
    return code, kernel_desc('k3_kernel', NV, NV), f'; @launch kernel=k3_kernel grid=(256,1,1) block=(256,1,1) lds={4*21120}'
```

```python
import sys, os
sys.path.insert(0, os.path.dirname(__file__))
from common import *
import k0, k1

def build(out, which=('k0', 'k1')):
    ref = open(f'cdna_kernels/{NAME}.s.ref').read().splitlines()
    head = []
    for l in ref:
        if l.startswith('; @launch'): break
        head.append(l)
    launches = []
    codes = []; descs = []
    if 'k1' in which:
        c, d = k1.gen_k1(); codes.append(c); descs.append(d)
        launches.append('; @launch kernel=k1_kernel grid=(256,1,1) block=(256,1,1) lds=163840')
    if 'k2' in which:
        import k2
        c, d, l = k2.gen_k2(); codes.append(c); descs.append(d); launches.append(l)
    if 'k2m' in which:
        import k2m
        c, d, l = k2m.gen_k2(); codes.append(c); descs.append(d); launches.append(l)
    if 'k3' in which:
        import k3
        c, d, l = k3.gen_k3(); codes.append(c); descs.append(d); launches.append(l)
    s = '\n'.join(head) + '\n' + '\n'.join(launches) + '\n'
    s += '.amdgcn_target "amdgcn-amd-amdhsa--gfx950"\n'
    s += ''.join(codes) + 'code_end:\n' + ''.join(descs)
    open(out, 'w').write(s)
    print('wrote', out, len(s), 'bytes')

if __name__ == '__main__':
    out = sys.argv[1] if len(sys.argv) > 1 else f'cdna_kernels/{NAME}.s'
    which = sys.argv[2].split(',') if len(sys.argv) > 2 else ('k1', 'k2m')
    build(out, which)
```

```python
from common import *
from k0 import load_kernargs

NBUF = flag('NBUF', 4)
BUF = 24576
VOFF = 12288
MISC = NBUF * BUF
LDS_ATT = MISC + 4096
GRING = LDS_ATT
LDS_ALL = 163840
DONE = MISC + 4
B0 = 80.0
RCMASK = flag('RCMASK', 2)
sWS = 24
sWAVE, sHEAD, sQB, sTT = 28, 29, 30, 31
sDOFF, sDSTEP, sM0B = 32, 33, 34
sKH = 35
sMASK = 36
sCH, sRB, sWB = 42, 43, 44
sTGT = 45
sFLAG = 46
sH1 = 50
sT = 52
sSPIN = 60
sRC = 61
sP, sODD = 62, 63
vS = [0, 16]
vO = [32, 48]
vP = 64
vK1, vK2 = 72, 76
vG0 = [80, 84]
vG1 = 88
vQ1 = [92, 96]
vQ2 = [100, 102]
vAK1, vAK2, vAV = 104, 105, 106
vBK1, vBK2, vBV = 107, 108, 109
vD = 110
vNM = [113, 114]
vDL = [115, 116]
vCA, vCV, vONE = 117, 118, 119
vT = 120
vL16, vLANE = 128, 129
NV = 168
MF = 'v_mfma_f32_32x32x16_bf16'
MF8 = 'v_mfma_f32_32x32x8_bf16'

def rd_k(kt):
    t = kt % 4
    return [I('ds_read_b128', V(vK1, 4), V(vAK1), mods=f'offset:{t*1536}'),
            I('ds_read_b64', V(vK2, 2), V(vAK2), mods=f'offset:{t*1536}')]
def rd_g0(kt): return I('ds_read_b128', V(vG0[kt & 1], 4), V(vAV), mods=f'offset:{(kt%4)*1536}')
def rd_g1(kt): return I('ds_read_b128', V(vG1, 4), V(vAV), mods=f'offset:{(kt%4)*1536+768}')
def s_mfma(u):
    b = u & 1
    d = V(vS[b], 16)
    return [I(MF, d, V(vK1, 4), V(vQ1[b], 4), 0), I(MF8, d, V(vK2, 2), V(vQ2[b], 2), d)]
def pv0(u): return I(MF, V(vO[u & 1], 16), V(vG0[(u >> 1) & 1], 4), V(vP, 4), V(vO[u & 1], 16))
def pv1(u): return I(MF, V(vO[u & 1], 16), V(vG1, 4), V(vP + 4, 4), V(vO[u & 1], 16))

def dma_chunk(inloop=False):
    out = [I('s_add_u32', 'm0', S(sM0B), S(sWB))]
    if inloop:
        out.append(I('s_cmp_lt_u32', S(sCH), 9 - NBUF))
        out.append(I('s_cbranch_scc0', 'k2_nodma'))
    for i in range(3):
        out.append(I('s_mov_b64', 'exec', S(sMASK + 2 * i, 2)))
        out.append(I('buffer_load_dwordx4', V(vD + i), S(sWS, 4), S(sDOFF), mods=f'offen offset:{i*1024} lds', tag='kv'))
    out.append(I('s_mov_b64', 'exec', -1))
    out.append(I('s_add_u32', S(sDOFF), S(sDOFF), S(sDSTEP)))
    out.append(I('s_add_u32', S(sWB), S(sWB), BUF))
    out.append(I('s_cmp_ge_u32', S(sWB), NBUF * BUF))
    out.append(I('s_cselect_b32', S(sWB), 0, S(sWB)))
    if inloop: out.append(Inst('label', ['k2_nodma']))
    return out

def set_m(o, q, target_neg):
    o.append(I('v_and_b32', V(vNM[q]), 0xffff0000, target_neg))
    o.append(I('v_lshrrev_b32', V(vT + 7), 16, V(vNM[q])))
    o.append(I('v_cndmask_b32', V(vQ2[q]), V(vQ2[q]), V(vT + 7), S(sH1, 2)))

def recenter_code(q):
    r = []
    l = V(vO[q] + 8)
    r.append(I('v_mov_b32', V(vT), l))
    r.append(I('v_mov_b32', V(vT + 1), l))
    r.append(I('v_mov_b32', V(vT + 4), V(vNM[q])))
    r.append(I('v_permlane32_swap_b32', V(vT), V(vT + 1)))
    r.append(I('v_cmp_nge_f32', 'vcc', 2.0 ** 120, V(vT + 1)))
    r.append(I('v_log_f32', V(vT + 2), V(vT + 1)))
    r.append(I('s_or_b64', S(sFLAG + 2 * q, 2), S(sFLAG + 2 * q, 2), 'vcc'))
    r.append(I('v_sub_f32', V(vT + 3), V(vNM[q]), V(vT + 2)))
    r.append(I('v_add_f32', V(vT + 3), -B0, V(vT + 3)))
    r.append(I('v_rndne_f32', V(vT + 3), V(vT + 3)))
    set_m(r, q, V(vT + 3))
    r.append(I('v_sub_f32', V(vT + 4), V(vNM[q]), V(vT + 4)))
    r.append(I('v_cvt_i32_f32', V(vDL[q]), V(vT + 4)))
    return r

_lab = [0]
def cond_block(code):
    _lab[0] += 1
    L = f'k2_skip{_lab[0]}'
    return [I('s_bitcmp1_b32', S(sRC), S(sCH)), I('s_cbranch_scc0', L)] + code + [I('s_nop', 1), Inst('label', [L])]

def unit(t):
    b = t & 1
    s = vS[b]; sp = vS[b ^ 1]
    kt = t >> 1
    E = lambda r: I('v_exp_f32', V(s + r), V(s + r))
    C = lambda k: I('v_cvt_pk_bf16_f32', V(vP + k), V(s + 2 * k), V(s + 2 * k + 1))
    Cp = lambda k: I('v_cvt_pk_bf16_f32', V(vP + k), V(sp + 2 * k), V(sp + 2 * k + 1))
    sm = s_mfma(t + 1)
    out = []
    PR = flag('K2PRIO', 1)
    if PR == 1 and t % 2 == 0: out.append(I('s_setprio', 3 - ((t + 2) % 8) // 2))
    out += [Cp(6), Cp(7), E(0), E(1), E(2), E(3)]
    if t in (6, 7):
        out += cond_block([I('s_nop', 3)] + [I('v_ldexp_f32', V(vO[b] + r), V(vO[b] + r), V(vDL[b])) for r in range(12)])
    if t in (5, 6):
        out += cond_block([I('s_nop', 4)] + recenter_code(b ^ 1))
    if b == 1:
        w = Inst('raw', ['']); w.waitfor = 'explicit'; w.prewait = [None, 0]; out.append(w)
    out += [sm[0], C(0), C(1), E(4), E(5)]
    if t == 5: out.append(I('v_readfirstlane_b32', S(sT), V(vCV)))
    out += [E(6), E(7), sm[1]]
    if t == 6:
        out.append(I('s_cmp_lt_u32', S(sT), S(sTGT)))
        out.append(I('s_cbranch_scc1', 'k2_spin'))
        out.append(Inst('label', ['k2_spin_done']))
        out.append(I('s_add_u32', S(sRB), S(sRB), BUF))
        out.append(I('s_cmp_ge_u32', S(sRB), NBUF * BUF))
        out.append(I('s_cselect_b32', S(sRB), 0, S(sRB)))
        out.append(I('s_add_u32', S(sTGT), S(sTGT), 8))
        out.append(I('v_add_u32', V(vAK1), S(sRB), V(vBK1)))
        out.append(I('v_add_u32', V(vAK2), S(sRB), V(vBK2)))
    out += [C(2), C(3), E(8), E(9), E(10), E(11), pv1(t - 1)]
    if b == 0:
        out += rd_k(kt + 1) + [rd_g1(kt)]
        if t == 6: out.append(I('v_add_u32', V(vAV), S(sRB), V(vBV)))
        out += [rd_g0(kt + 1)]
        if t == 2:
            w = Inst('raw', ['']); w.waitfor = 'explicit'; w.prewait = [3 * (NBUF - 3), None]; out.append(w)
            out.append(I('s_cmp_lt_u32', S(sCH), 10 - NBUF))
            out.append(I('s_cbranch_scc1', 'k2_nodrain'))
            out.append(Inst('raw', ['  s_waitcnt vmcnt(0)']))
            out.append(Inst('label', ['k2_nodrain']))
            out.append(I('s_mov_b64', 'exec', 1))
            out.append(I('ds_add_u32', V(vCA), V(vONE)))
            out.append(I('s_mov_b64', 'exec', -1))
        if t == 4: out.append(I('ds_read_b32', V(vCV), V(vCA)))
        if t == 6: out += dma_chunk(True)
    out += [C(4), C(5), E(12), E(13), E(14), E(15), pv0(t)]
    return out

def att_prologue(p):
    lane = V(vLANE)
    t0, t1, t2, t3 = V(vT), V(vT + 1), V(vT + 2), V(vT + 3)
    p('s_lshr_b32', S(sKH), S(sWAVE), 2)
    p('s_and_b32', S(sT + 4), S(sWAVE), 3)
    p('s_lshl_b32', S(sTT), S(sQB), 3)
    p('s_lshl_b32', S(sT), S(sT + 4), 1)
    p('s_add_u32', S(sTT), S(sTT), S(sT))
    p('s_add_u32', S(sTT), S(sTT), S(sKH))
    p('s_mul_i32', S(sP), S(sHEAD), 5)
    p('s_lshr_b32', S(sP), S(sP), 1)
    p('s_and_b32', S(sODD), S(sHEAD), 1)
    p('s_mov_b32', S(sH1), 0)
    p('s_mov_b32', S(sH1 + 1), -1)
    p('s_mov_b64', S(sFLAG, 2), 0)
    p('s_mov_b64', S(sFLAG + 2, 2), 0)
    p('s_mov_b32', S(sRC), RCMASK)
    p('s_mul_i32', S(sM0B), S(sT + 4), 3072)
    p('s_lshr_b32', S(sT), S(sT + 4), 1)
    p('s_lshl_b32', S(sT), S(sT), 5)
    p('s_and_b32', S(sT + 1), S(sT + 4), 1)
    p('s_lshl_b32', S(sT + 1), S(sT + 1), 1)
    p('s_add_u32', S(sT + 6), S(sT), S(sT + 1))
    p('s_cmp_lt_u32', S(sWAVE), 4)
    p('s_cbranch_scc0', 'k2_kw')
    p('s_add_u32', S(sM0B), S(sM0B), VOFF)
    for i in range(3):
        p('v_add_u32', t0, 64 * i, lane)
        p('v_mul_u32_u24', t1, 2731, t0)
        p('v_lshrrev_b32', t1, 16, t1)
        p('v_mul_u32_u24', t2, 24, t1)
        p('v_sub_u32', t2, t0, t2)
        p('v_cmp_gt_u32', S(sMASK + 2 * i, 2), 20, t2)
        p('v_mul_u32_u24', t1, 10240, t1)
        p('v_lshl_add_u32', t1, t2, 4, t1)
        p('v_add_u32', V(vD + i), BIAS - 1024 * i, t1)
    p('s_mul_i32', S(sDOFF), S(sT + 6), VT_TT)
    p('s_mul_i32', S(sT + 5), S(sHEAD), 320)
    p('s_add_u32', S(sDOFF), S(sDOFF), S(sT + 5))
    p('s_add_u32', S(sDOFF), S(sDOFF), WS_VT)
    p('s_mov_b32', S(sDSTEP), 4 * VT_TT)
    p('s_branch', 'k2_dj')
    p.label('k2_kw')
    for i in range(3):
        p('v_add_u32', t0, 64 * i, lane)
        p('v_cmp_le_u32', 'vcc', 96, t0)
        p('v_lshlrev_b32', t1, 4, t0)
        p('v_add_u32', t2, QK_TT - 1536, t1)
        p('v_cndmask_b32', t1, t1, t2, 'vcc')
        p('v_add_u32', V(vD + i), BIAS - 1024 * i, t1)
        p('s_mov_b64', S(sMASK + 2 * i, 2), -1)
    p('s_mul_i32', S(sDOFF), S(sT + 6), QK_TT)
    p('s_add_u32', S(sT + 5), S(sP), 80)
    p('s_lshl_b32', S(sT + 5), S(sT + 5), 9)
    p('s_add_u32', S(sDOFF), S(sDOFF), S(sT + 5))
    p('s_mov_b32', S(sDSTEP), 4 * QK_TT)
    p.label('k2_dj')
    p.wait(lgkm=0)
    srd(p, sWS, 22, WS_VT + 64 * VT_TT, BIAS)
    p('s_mov_b32', S(sWB), 0)
    p('s_mov_b32', S(sRB), 0)
    p.add(dma_chunk())
    p('s_add_u32', S(sT + 5), S(sP), S(sODD))
    p('s_lshl_b32', S(sT + 5), S(sT + 5), 9)
    p('s_lshl_b32', S(sT + 6), S(sODD), 1)
    p('s_sub_u32', S(sT + 6), 2, S(sT + 6))
    p('s_lshl_b32', S(sT + 6), S(sT + 6), 9)
    p('s_lshl_b32', S(sT + 7), S(sODD), 3)
    p('s_add_u32', S(sT + 6), S(sT + 6), S(sT + 7))
    p('s_lshl_b32', S(sT + 7), S(sP), 9)
    p('s_add_u32', S(sT + 7), S(sT + 7), S(sT + 6))
    p('v_and_b32', t3, 511, V(vL16))
    for j in range(2):
        p('s_xor_b32', S(sT), S(sTT), j)
        p('s_mul_i32', S(sT), S(sT), QK_TT)
        p('s_add_u32', S(sT), S(sT), BIAS)
        p('s_add_u32', S(sT + 1), S(sT), S(sT + 5))
        p('s_add_u32', S(sT + 2), S(sT), S(sT + 7))
        p('buffer_load_dwordx4', V(vQ1[j], 4), V(vL16), S(sWS, 4), S(sT + 1), mods='offen')
        p('buffer_load_dwordx2', V(vQ2[j], 2), t3, S(sWS, 4), S(sT + 2), mods='offen')
    for c in range(1, NBUF - 1):
        p.add(dma_chunk())
    p('s_mul_i32', S(sT + 3), S(sKH), 6144)
    p('s_lshl_b32', S(sT + 4), S(sODD), 9)
    p('s_add_u32', S(sT + 4), S(sT + 4), S(sT + 3))
    p('v_add_u32', V(vBK1), S(sT + 4), V(vL16))
    p('v_add_u32', t0, S(sT + 6), t3)
    p('v_mov_b32', t1, VOFF + 320)
    p('v_cndmask_b32', t0, t0, t1, S(sH1, 2))
    p('v_add_u32', V(vBK2), S(sT + 3), t0)
    p('v_and_b32', t0, 31, lane)
    p('v_and_b32', t1, 3, t0)
    p('v_bfe_u32', t2, t0, 2, 1)
    p('v_lshl_add_u32', t1, t2, 3, t1)
    p('v_bfe_u32', t2, t0, 3, 1)
    p('v_lshl_add_u32', t1, t2, 2, t1)
    p('v_cmp_gt_u32', 'vcc', 16, t0)
    p('v_min_u32', t0, 23, t0)
    p('v_cndmask_b32', t1, t0, t1, 'vcc')
    p('v_lshrrev_b32', t2, 5, lane)
    p('v_mul_u32_u24', t2, 384, t2)
    p('v_lshl_add_u32', t1, t1, 4, t2)
    p('s_add_u32', S(sT + 3), S(sT + 3), VOFF)
    p('v_add_u32', V(vBV), S(sT + 3), t1)
    p('v_mov_b32', V(vAK1), V(vBK1)); p('v_mov_b32', V(vAK2), V(vBK2)); p('v_mov_b32', V(vAV), V(vBV))
    p('v_lshrrev_b32', t0, 7, V(0))
    p('v_mul_u32_u24', t0, BUF, t0)
    p('v_bfe_u32', t1, V(0), 2, 5)
    p('v_mul_u32_u24', t1, 384, t1)
    p('v_add_u32', t0, t0, t1)
    p('v_and_b32', t1, 3, V(0))
    p('v_lshl_add_u32', t0, t1, 4, t0)
    p('v_add_u32', t0, VOFF + 320, t0)
    p('v_cmp_eq_u32', 'vcc', 0, t1)
    p('v_mov_b32', t2, 0x3f803f80)
    p('v_cndmask_b32', V(vP), 0, t2, 'vcc')
    for r in range(1, 4): p('v_mov_b32', V(vP + r), V(vP))
    p('v_mov_b32', V(vCA), MISC)
    p('v_mov_b32', V(vONE), 1)
    p('v_mov_b32', V(vG1), 0)
    p('s_cmp_ge_u32', S(sWAVE), NBUF * 2)
    p('s_cbranch_scc1', 'k2_noones')
    p('ds_write_b128', t0, V(vP, 4))
    p.label('k2_noones')
    p('v_lshrrev_b32', t1, 2, V(vL16))
    p('v_add_u32', t1, MISC, t1)
    p('ds_write_b32', t1, V(vG1))
    for r in range(32): p('v_mov_b32', V(vO[0] + r), 0)
    for r in range(12, 16): p('v_mov_b32', V(vS[1] + r), 0)
    for r in range(4, 6): p('v_mov_b32', V(vP + r), 0)
    for r in range(1, 4): p('v_mov_b32', V(vG1 + r), 0)
    for j in range(2):
        for r in range(2): p('v_cndmask_b32', V(vQ2[j] + r), V(vQ2[j] + r), 0, S(sH1, 2))
    p('s_mov_b32', S(sTGT), 8)
    p('s_mov_b32', S(sCH), 0)
    p.wait(vm=3 * (NBUF - 2), lgkm=0)

def att_first(p):
    t0, t1 = V(vT), V(vT + 1)
    p.add(rd_k(0)); p.add([rd_g0(0)])
    sc = [vS[0], vT + 8 - 8]
    for q in range(2):
        d = V(vS[0], 16)
        p(MF, d, V(vK1, 4), V(vQ1[q], 4), 0)
        p(MF8, d, V(vK2, 2), V(vQ2[q], 2), d)
        s = vS[0]
        p('v_max3_f32', t0, V(s), V(s + 1), V(s + 2))
        p('v_max3_f32', t1, V(s + 3), V(s + 4), V(s + 5))
        p('v_max3_f32', t0, t0, V(s + 6), V(s + 7))
        p('v_max3_f32', t1, t1, V(s + 8), V(s + 9))
        p('v_max3_f32', t0, t0, V(s + 10), V(s + 11))
        p('v_max3_f32', t1, t1, V(s + 12), V(s + 13))
        p('v_max3_f32', t0, t0, V(s + 14), V(s + 15))
        p('v_max_f32', t0, t0, t1)
        p('v_mov_b32', t1, t0)
        p('v_permlane32_swap_b32', t0, t1)
        p('v_max_f32', t0, t0, t1)
        p('v_add_f32', t0, B0, t0)
        p('v_rndne_f32', t0, '-' + t0)
        l = []; set_m(l, q, t0); p.add(l)
    p.add(s_mfma(0))

def att_epilogue(e):
    t0, t1, t2, t3 = V(vT), V(vT + 1), V(vT + 2), V(vT + 3)
    for k in (6, 7): e('v_cvt_pk_bf16_f32', V(vP + k), V(vS[1] + 2 * k), V(vS[1] + 2 * k + 1))
    XB = (6 % NBUF) * BUF
    e('s_mul_i32', S(sT), S(sWAVE), 3072)
    e('s_add_u32', S(sT), S(sT), XB)
    e('v_add_u32', t0, S(sT), V(vL16))
    e.add([pv1(1)])
    e('s_xor_b32', S(sT + 1), S(sWAVE), 4)
    e('s_mul_i32', S(sT + 2), S(sT + 1), 3072)
    e('s_add_u32', S(sT + 2), S(sT + 2), XB)
    e('v_add_u32', t1, S(sT + 2), V(vL16))
    e('v_lshrrev_b32', t3, 2, V(vL16))
    e('s_lshl_b32', S(sT), S(sWAVE), 8)
    e('s_add_u32', S(sT), S(sT), MISC + 256)
    e('v_add_u32', t2, S(sT), t3)
    e('s_lshl_b32', S(sT), S(sT + 1), 8)
    e('s_add_u32', S(sT), S(sT), MISC + 256)
    e('v_add_u32', t3, S(sT), t3)
    e('ds_write_b32', t2, V(vNM[1]))
    e('v_mov_b32', V(vT + 4), 0x7f800000)
    e('v_cndmask_b32', V(vO[0] + 8), V(vO[0] + 8), V(vT + 4), S(sFLAG, 2))
    e('v_cndmask_b32', V(vO[1] + 8), V(vO[1] + 8), V(vT + 4), S(sFLAG + 2, 2))
    for a in range(3): e('ds_write_b128', t0, V(vO[1] + 4 * a, 4), mods=f'offset:{a*1024}')
    e('s_lshl_b32', S(sT), S(sWAVE), 2)
    e('s_add_u32', S(sT), S(sT), MISC + 64)
    e('v_mov_b32', V(vT + 5), S(sT))
    e('s_lshl_b32', S(sT), S(sT + 1), 2)
    e('s_add_u32', S(sT), S(sT), MISC + 64)
    e('v_mov_b32', V(vT + 6), S(sT))
    e('ds_write_b32', V(vT + 5), V(vONE))
    e('s_mov_b32', S(sSPIN), 1 << 20)
    e.label('k2_xw')
    e('ds_read_b32', V(vT + 7), V(vT + 6))
    e.wait(lgkm=0)
    e('v_readfirstlane_b32', S(sT), V(vT + 7))
    e('s_sub_u32', S(sSPIN), S(sSPIN), 1)
    e('s_cbranch_scc1', 'k2_xd')
    e('s_cmp_eq_u32', S(sT), 0)
    e('s_cbranch_scc1', 'k2_xw')
    e.label('k2_xd')
    X = vS[0]
    e('ds_read_b32', V(vT + 4), t3)
    for a in range(3): e('ds_read_b128', V(X + 4 * a, 4), t1, mods=f'offset:{a*1024}')
    e('v_min_f32', V(vT + 5), V(vNM[0]), V(vT + 4))
    e('v_sub_f32', V(vT + 6), V(vT + 5), V(vNM[0]))
    e('v_sub_f32', V(vT + 7), V(vT + 5), V(vT + 4))
    e('v_cvt_i32_f32', V(vT + 6), V(vT + 6))
    e('v_cvt_i32_f32', V(vT + 7), V(vT + 7))
    O = vO[0]
    for r in range(12): e('v_ldexp_f32', V(O + r), V(O + r), V(vT + 6))
    e.wait(lgkm=0)
    e('s_mov_b64', 'exec', 1)
    e('ds_add_u32', V(vCA), V(vONE), mods='offset:4')
    e('s_mov_b64', 'exec', -1)
    for r in range(12): e('v_ldexp_f32', V(X + r), V(X + r), V(vT + 7))
    for r in range(12): e('v_add_f32', V(O + r), V(O + r), V(X + r))
    e('v_mov_b32', t0, V(O + 8)); e('v_mov_b32', t1, V(O + 8))
    e('v_permlane32_swap_b32', t0, t1)

    e('v_rcp_f32', t0, t1)
    for r in range(12): e('v_mul_f32', V(O + r), V(O + r), t0)
    for r in range(6): e('v_cvt_pk_bf16_f32', V(O + r), V(O + 2 * r), V(O + 2 * r + 1))
    for r in range(6): e('v_min_u32', V(O + r), -2, V(O + r))
    srd(e, sWS, 22, WS_SIZE)
    e('s_mul_i32', S(sT), S(sTT), OF_TT)
    e('s_add_u32', S(sT), S(sT), WS_OF)
    e('s_lshl_b32', S(sT + 1), S(sHEAD), 10)
    e('s_add_u32', S(sT + 1), S(sT + 1), S(sT))
    e('buffer_store_dwordx4', V(O, 4), V(vL16), S(sWS, 4), S(sT + 1), mods='offen sc1')
    e('s_lshr_b32', S(sT + 1), S(sHEAD), 1)
    e('s_lshl_b32', S(sT + 1), S(sT + 1), 9)
    e('s_lshl_b32', S(sT + 2), S(sODD), 3)
    e('s_add_u32', S(sT + 1), S(sT + 1), S(sT + 2))
    e('s_add_u32', S(sT + 1), S(sT + 1), S(sT))
    e('s_add_u32', S(sT + 1), S(sT + 1), 32768)
    e('s_not_b64', 'exec', S(sH1, 2))
    e('buffer_store_dwordx2', V(O + 4, 2), V(vL16), S(sWS, 4), S(sT + 1), mods='offen sc1')
    e('s_mov_b64', 'exec', -1)

def spin_code():
    sp = Prog()
    sp.label('k2_spin')
    sp('s_mov_b32', S(sSPIN), 1 << 20)
    sp.label('k2_spin_l')
    sp('ds_read_b32', V(vCV), V(vCA))
    sp('s_waitcnt', 'lgkmcnt(0)')
    sp('v_readfirstlane_b32', S(sT), V(vCV))
    sp('s_sub_u32', S(sSPIN), S(sSPIN), 1)
    sp('s_cbranch_scc1', 'k2_spin_done')
    sp('s_cmp_lt_u32', S(sT), S(sTGT))
    sp('s_cbranch_scc1', 'k2_spin_l')
    sp('s_branch', 'k2_spin_done')
    return sp


DEPTH = 3
RING = 15360
SHARE = BUF // 2
gWS, gWD, gX, gOUT, gX4 = 24, 28, 36, 40, 8
WSLOT = 5120
HD = 6
gW, gTT, gCG, gM0B = 44, 45, 46, 47
gHO, gHB, gHE = 48, 49, 50
gWF, gWB_, gWE = 51, 52, 53
gOB, gTB, gSH, gOO = 54, 55, 56, 57
gVB, gVT = 58, 59
gT = 60
gRDY, gSPIN, gWV = 68, 69, 70
gRA = 28
gCO = 71
uACC = 0
uDA = 160
uWF = 80
uAF = 120
uE9 = 160
uTB, uTR, uL16, uLANE = 164, 165, 166, 167
uT = 144
ORDER = [4, 0, 1, 2, 3]

def g_hload(n):
    return [I('buffer_load_dwordx4', V(uAF + (n % HD) * 4, 4), V(uL16), S(gWS, 4), S(gHO), mods='offen'),
            I('s_add_u32', S(gHO), S(gHO), 1024), I('s_cmp_eq_u32', S(gHO), S(gHE)), I('s_cselect_b32', S(gHO), S(gHB), S(gHO))]

def g_wdma(n):
    slot = n % DEPTH
    out = []
    for q in range(5):
        out.append(I('s_add_u32', 'm0', S(gM0B), slot * WSLOT + q * 1024))
        out.append(I('buffer_load_dwordx4', V(uDA + q), S(gWD, 4), S(gWF), mods='offen lds', tag=('w', n)))
    out += [I('s_add_u32', S(gWF), S(gWF), 16 * 1280), I('s_cmp_eq_u32', S(gWF), S(gWE)), I('s_cselect_b32', S(gWF), S(gWB_), S(gWF))]
    return out

def g_reads(n):
    slot = n % DEPTH; b = n & 1
    return [I('ds_read_b64_tr_b16', V(uWF + b * 20 + q * 4 + j2 * 2, 2), V(uTR), mods=f'offset:{slot*WSLOT + q*64 + j2*1280}')
            for q in range(5) for j2 in range(2)]

def g_mm(n):
    b = n & 1
    a = uAF + (n % HD) * 4
    return [I(MF, V(uACC + q * 16, 16), V(uWF + b * 20 + q * 4, 4), V(a, 4), 0 if n == 0 else V(uACC + q * 16, 16)) for q in range(5)]

SEQ = [(q, i) for i in range(10) for q in (4, 0)] + [(q, i) for i in range(10) for q in (1, 2)] + [(3, i) for i in range(10)]
def wo_place(n):
    if n < 25: return gM0B, uTR, (n - 10) * 1024
    if n < 37: return gSH, uTB, (n - 25) * 1024
    return gSH, uTB, 2 * BUF + (n - 37) * 1024
def wo_reg(n): return uE9 if n == 49 else uWF + 4 * (n % 10)
def wo_dma(n):
    q, i = SEQ[n]
    src = [I('s_add_u32', S(gT + 5), S(gVB if i < 8 else gVT), (i if i < 8 else i - 8) * 5120), I('s_add_u32', S(gT + 5), S(gT + 5), S(gCO + q))]
    if n < 10 or n == 49:
        return src + [I('buffer_load_dwordx4', V(wo_reg(n), 4), V(uL16), S(gWS, 4), S(gT + 5), mods='offen')]
    base, _, off = wo_place(n)
    return [I('s_add_u32', 'm0', S(base), off)] + src + [I('buffer_load_dwordx4', V(uL16), S(gWS, 4), S(gT + 5), mods='offen lds', tag='wo')]
def wo_read(n):
    _, a, off = wo_place(n)
    return I('ds_read_b128', V(wo_reg(n), 4), V(a), mods=f'offset:{off}')

def lds_wait(name, off, target, sleep, pre=0):
    o = Prog()
    raw = lambda t: o.raw('  ' + t)
    tA, tB = V(uT + 6), V(uT + 7)
    o('v_mov_b32', tA, MISC + off)
    o('s_mov_b32', S(gSPIN), 1 << 18)
    if pre: o('s_sleep', pre)
    o('s_branch', name + 'e')
    o.label(name)
    o('s_sleep', sleep)
    o.label(name + 'e')
    o('ds_read_b32', tB, tA)
    raw('s_waitcnt lgkmcnt(0)')
    o('s_nop', 0)
    o('v_readfirstlane_b32', S(gT + 7), tB)
    o('s_sub_u32', S(gSPIN), S(gSPIN), 1)
    o('s_cbranch_scc1', name + 'd')
    o('s_cmp_lt_u32', S(gT + 7), target)
    o('s_cbranch_scc1', name)
    o.label(name + 'd')
    return o.ins

def o_poll(extra):
    o = Prog()
    raw = lambda t: o.raw('  ' + t)
    o('s_mov_b32', S(gRDY), 0)
    o('s_mov_b32', S(gSPIN), 1 << 16)
    for i in range(10):
        o('s_add_u32', S(gT), S(gOB if i < 8 else gTB), (i if i < 8 else i - 8) * 1024)
        raw(f'buffer_load_dwordx4 {V(uAF + 4 * i, 4)}, {V(uL16)}, {S(gWS, 4)}, {S(gT)} offen sc1')
    o.add(extra)
    raw(f's_waitcnt vmcnt({sum(x.kind == "vmem" for x in extra)})')
    o('s_branch', 'k2_oc')
    o.label('k2_op')
    for i in range(10):
        o('s_bitcmp1_b32', S(gRDY), i)
        o('s_cbranch_scc1', f'k2_ol{i}')
        o('s_add_u32', S(gT), S(gOB if i < 8 else gTB), (i if i < 8 else i - 8) * 1024)
        raw(f'buffer_load_dwordx4 {V(uAF + 4 * i, 4)}, {V(uL16)}, {S(gWS, 4)}, {S(gT)} offen sc1')
        o.label(f'k2_ol{i}')
    raw('s_waitcnt vmcnt(0)')
    o.label('k2_oc')
    tm = V(uLANE)
    for i in range(10):
        b = uAF + 4 * i
        o('v_max3_u32', tm, V(b), V(b + 1), V(b + 2))
        o('v_max_u32', tm, tm, V(b + 3))
        o('v_cmp_eq_u32', 'vcc', -1, tm)
        o('s_cmp_eq_u64', 'vcc', 0)
        o('s_cselect_b32', S(gT), 1 << i, 0)
        o('s_or_b32', S(gRDY), S(gRDY), S(gT))
    o('s_sub_u32', S(gSPIN), S(gSPIN), 1)
    o('s_cbranch_scc1', 'k2_od')
    o('s_cmp_lg_u32', S(gRDY), 1023)
    o('s_cbranch_scc1', 'k2_op')
    o.label('k2_od')
    return o.ins

def gemm_path():
    p = Prog()
    p.label('k2_gemm')
    lane = V(uLANE); t0, t1, t2, t3 = (V(uT + k) for k in range(4))
    p('v_and_b32', lane, 63, V(0))
    p('v_lshlrev_b32', V(uL16), 4, lane)
    p('s_sub_u32', S(gW), S(sWAVE), 8)
    p('s_mov_b32', S(gWV), S(gW))
    if flag('GPRIO', 0): p('s_setprio', flag('GPRIO', 0))
    p('s_and_b32', S(gT), S(2), 7)
    p('s_lshr_b32', S(gT + 1), S(2), 5)
    p('s_lshl_b32', S(gT + 2), S(gT + 1), 3)
    p('s_add_u32', S(gTT), S(gT), S(gT + 2))
    p('s_bfe_u32', S(gCG), S(2), (2 << 16) | 3)
    p('s_mul_i32', S(gM0B), S(gW), RING)
    p('s_add_u32', S(gM0B), S(gM0B), GRING)
    p('s_mul_i32', S(gSH), S(gW), SHARE)
    p('s_mul_i32', S(gT + 1), S(gT + 1), 27)
    p('s_lshr_b32', S(gT + 1), S(gT + 1), 3)
    if not flag('GROT', 1): p('s_mov_b32', S(gT + 1), 0)
    p('s_lshl_b32', S(gT + 2), S(gW), 2)
    p('s_add_u32', S(gT + 2), S(gT + 2), 4)
    for q in range(5):
        p('v_add_u32', t0, 64 * q, lane)
        p('v_mul_u32_u24', t1, 3277, t0)
        p('v_lshrrev_b32', t1, 16, t1)
        p('v_mul_u32_u24', t2, 20, t1)
        p('v_sub_u32', t2, t0, t2)
        p('v_add_u32', t3, S(gT + 2), t2)
        p('v_and_b32', t3, 15, t3)
        p('v_cmp_gt_u32', 'vcc', 16, t2)
        p('v_cndmask_b32', t2, t2, t3, 'vcc')
        p('v_mul_u32_u24', t3, 1280, t1)
        p('v_lshl_add_u32', V(uDA + q), t2, 4, t3)
    p('v_lshrrev_b32', t0, 5, lane)
    p('v_bfe_u32', t1, lane, 2, 2)
    p('v_lshl_add_u32', t0, t0, 3, t1)
    p('v_mul_u32_u24', t0, 320, t0)
    p('v_bfe_u32', t1, lane, 4, 1)
    p('v_lshl_add_u32', t0, t1, 5, t0)
    p('v_and_b32', t1, 1, lane)
    p('v_lshl_add_u32', t0, t1, 4, t0)
    p('v_bfe_u32', t1, lane, 1, 1)
    p('v_lshl_add_u32', t0, t1, 3, t0)
    p('v_add_u32', V(uTR), S(gM0B), t0)
    p('s_mul_i32', S(gT + 5), S(gCG), 320)
    p('s_mul_i32', S(gHB), S(gTT), H_TT)
    p('s_mul_i32', S(gT), S(gW), 27 * 1024)
    p('s_add_u32', S(gHB), S(gHB), S(gT))
    p('s_add_u32', S(gHB), S(gHB), WS_H)
    p('s_add_u32', S(gHE), S(gHB), 27 * 1024)
    p('s_lshl_b32', S(gT), S(gT + 1), 10)
    p('s_add_u32', S(gHO), S(gHB), S(gT))
    p('s_mul_i32', S(gT + 2), S(gCG), WP_CG)
    p('s_add_u32', S(gT + 2), S(gT + 2), WS_WP)
    p('s_mul_i32', S(gWB_), S(gW), 27 * 16 * 1280)
    p('s_add_u32', S(gWB_), S(gWB_), S(gT + 5))
    p('s_add_u32', S(gWE), S(gWB_), 27 * 16 * 1280)
    p('s_mul_i32', S(gT), S(gT + 1), 16 * 1280)
    p('s_add_u32', S(gWF), S(gWB_), S(gT))
    p('s_mul_i32', S(gVB), S(gW), 8 * 5120)
    p('s_add_u32', S(gVB), S(gVB), S(gT + 2))
    p('s_mul_i32', S(gVT), S(gW), 2 * 5120)
    p('s_add_u32', S(gVT), S(gVT), S(gT + 2))
    p('s_add_u32', S(gVT), S(gVT), 32 * 5120)
    for q in range(4):
        p('s_add_u32', S(gT + 1), S(gW), 1 + q)
        p('s_and_b32', S(gT + 1), S(gT + 1), 3)
        p('s_lshl_b32', S(gCO + q), S(gT + 1), 10)
    p('s_mov_b32', S(gCO + 4), 4096)
    p.wait(lgkm=0)
    srd(p, gWS, 22, WS_SIZE)
    srd(p, gWD, 16, 1728 * 1280)
    N = 27
    srd(p, gX, 4, 2048 * 1280)
    srd(p, gX4, 4, 2048 * 1280)
    p('s_cmp_eq_u32', S(gW), 0)
    p('s_cselect_b32', S(gX4 + 2), S(gX4 + 2), 0)
    srd(p, gOUT, 18, 2048 * 1280)
    p('s_mul_i32', S(gOB), S(gTT), OF_TT)
    p('s_add_u32', S(gOB), S(gOB), WS_OF)
    p('s_lshl_b32', S(gT), S(gW), 11)
    p('s_add_u32', S(gTB), S(gOB), S(gT))
    p('s_add_u32', S(gTB), S(gTB), 32768)
    p('s_lshl_b32', S(gT), S(gW), 13)
    p('s_add_u32', S(gOB), S(gOB), S(gT))
    p('s_mul_i32', S(gOO), S(gTT), 32 * 1280)
    p('s_add_u32', S(gOO), S(gOO), S(gT + 5))
    p('s_barrier')
    p.add(stamp(1))
    for n in range(DEPTH):
        p.add(g_hload(n)); p.add(g_wdma(n))
    for n in range(DEPTH, HD): p.add(g_hload(n))
    p.wait_tag(('w', 0))
    p.add(g_reads(0))
    for n in range(N):
        m = g_mm(n)
        seq = []
        w = Inst('raw', ['']); w.waitfor = 'explicit'; w.prewait = [None, 0]; seq.append(w)
        iss = g_wdma(n + DEPTH) if n + DEPTH < N else [x for k in range(5) for x in wo_dma(10 + (n - 24) * 5 + k)]
        seq += [m[0]] + iss
        if n + 1 < N:
            w = Inst('raw', ['']); w.waitfor = {('w', n + 1)}
            r = g_reads(n + 1)
            seq += [m[1], w] + r[:4] + [m[2]] + r[4:7] + [m[3]] + r[7:] + [m[4]]
        else:
            seq += m[1:]
        if n + HD < N: seq += g_hload(n + HD)
        p.add(seq)
    p.add(stamp(2))
    p('s_setprio', 3)
    for n in list(range(10)) + [49]: p.add(wo_dma(n))
    p('v_add_u32', V(uTR), S(gM0B), V(uL16))
    p('v_add_u32', V(uTB), S(gSH), V(uL16))
    vXO = uT + 4
    p('v_and_b32', t0, 31, lane)
    p('v_mul_u32_u24', t0, 1280, t0)
    p('v_lshrrev_b32', t1, 5, lane)
    p('v_lshl_add_u32', V(vXO), t1, 4, t0)
    p('s_lshl_b32', S(gT + 2), S(gW), 6)
    p('s_add_u32', S(gT + 2), S(gT + 2), S(gOO))
    for k in range(2):
        p('buffer_load_dwordx4', V(uAF + 4 * k, 4), V(vXO), S(gX, 4), S(gT + 2), mods=f'offen offset:{32*k}')
        p('buffer_load_dwordx4', V(uAF + 8 + 4 * k, 4), V(vXO), S(gX4, 4), S(gOO), mods=f'offen offset:{256+32*k}')
    for k, q in ((0, 3), (1, 4)):
        for r in range(8):
            x = V(uAF + 8 * k + r)
            p('v_lshlrev_b32', t0, 16, x)
            p('v_and_b32', t1, 0xffff0000, x)
            p('v_add_f32', V(uACC + 16 * q + 2 * r), V(uACC + 16 * q + 2 * r), t0)
            p('v_add_f32', V(uACC + 16 * q + 2 * r + 1), V(uACC + 16 * q + 2 * r + 1), t1)
    p.add(lds_wait('k2_gw1', 0, 8 * (11 - NBUF), 16))
    for n in range(25, 37): p.add(wo_dma(n))
    for k, (mul, add) in enumerate(((RING, GRING + 4096), (SHARE, 0), (SHARE, 4096))):
        p('s_sub_u32', S(gRA + k), S(gW), 1 + k)
        p('s_and_b32', S(gRA + k), S(gRA + k), 3)
        p('s_mul_i32', S(gRA + k), S(gRA + k), mul)
        p('s_add_u32', S(gRA + k), S(gRA + k), add)
    p('s_lshl_b32', S(gRA + 3), S(gW), 10)
    p('s_add_u32', S(gRA + 3), S(gRA + 3), GRING)
    p('s_lshl_b32', S(gRA + 4), S(gW), 6)
    p('s_add_u32', S(gRA + 4), S(gRA + 4), S(gOO))
    p('s_lshr_b32', S(gRA + 5), S(gW), 1)
    p('s_lshl_b32', S(gRA + 5), S(gRA + 5), 5)
    p('s_and_b32', S(gT + 4), S(gW), 1)
    p('s_lshl_b32', S(gT + 4), S(gT + 4), 3)
    p('s_add_u32', S(gRA + 5), S(gRA + 5), S(gT + 4))
    p('s_add_u32', S(gRA + 5), S(gRA + 5), S(gOO))
    p.add(lds_wait('k2_gw2', 0, 64, 8))
    p.add(stamp(8))
    p.add(lds_wait('k2_gw3', 4, 8, flag('GSL', 2), flag('GPRE', 16)))
    p.add(stamp(5))
    p.add(o_poll([x for n in range(37, 49) for x in wo_dma(n)]))
    p.add(stamp(3))
    if flag('PROFT'): p.add(stampc(1))
    RES = {4: (uTR, 0), 0: (uTR, 4096), 1: (uTB, 0), 2: (uTB, 4096)}
    def res_write(q):
        a, off = RES[q]
        return [I('ds_write_b128', V(a), V(uACC + 16 * q + 4 * k, 4), mods=f'offset:{off + k*1024}') for k in range(4)]
    def res_read(q, stride):
        for k in range(4): p('ds_read_b128', V(uACC + 16 * q + 4 * k, 4), V(uACC + 16 * q + 15), mods=f'offset:{k*stride}')
    vOUT = V(uLANE)
    Q = uACC + 64
    for n, (q, i) in enumerate(SEQ):
        if n == 27: p.wait_tag('wo')
        p(MF, V(uACC + 16 * q, 16), V(wo_reg(n), 4), V(uAF + 4 * i, 4), V(uACC + 16 * q, 16))
        if n + 10 < 49: p.add(wo_read(n + 10))
        if n == 2:
            p('v_bfe_u32', vOUT, V(uL16), 4, 5)
            p('v_mul_u32_u24', vOUT, 80, vOUT)
        if n == 3:
            p('v_lshlrev_b32', vOUT, 4, vOUT)
            p('v_cmp_lt_u32', 'vcc', 511, V(uL16))
        if n == 4:
            p('s_mov_b64', 'exec', 'vcc')
            p('v_add_u32', vOUT, 16, vOUT)
            p('s_mov_b64', 'exec', -1)
        if n == 21: p.add(res_write(4))
        if n == 22: p.add(res_write(0))
        if n == 24:
            p.wait(lgkm=0)
            p('v_add_u32', V(Q + 15), S(gRA + 3), V(uL16))
            p('v_add_u32', V(uACC + 15), S(gRA), V(uL16))
            p('s_barrier')
        if n == 25: res_read(4, RING)
        if n == 26: res_read(0, 1024)
        if n == 30:
            for r in range(4): p('v_add_f32', V(Q + r), V(Q + r), V(Q + 4 + r))
        if n == 31:
            for r in range(4): p('v_add_f32', V(Q + 8 + r), V(Q + 8 + r), V(Q + 12 + r))
        if n == 32:
            for r in range(4): p('v_add_f32', V(Q + r), V(Q + r), V(Q + 8 + r))
        if n == 33:
            p('v_cvt_pk_bf16_f32', V(Q), V(Q), V(Q + 1))
            p('v_cvt_pk_bf16_f32', V(Q + 1), V(Q + 2), V(Q + 3))
            p('buffer_store_dwordx2', V(Q, 2), vOUT, S(gOUT, 4), S(gRA + 5), mods='offen offset:256')
        if n == 40: p.add(res_write(1))
        if n == 41: p.add(res_write(2))
        if n == 43:
            p.wait(lgkm=0)
            p('v_add_u32', V(uACC + 31), S(gRA + 1), V(uL16))
            p('v_add_u32', V(uACC + 47), S(gRA + 2), V(uL16))
            if flag('PROFT'): p.add(stampc(2))
            p('s_barrier')
            if flag('PROFT'): p.add(stampc(8))
            res_read(1, 1024); res_read(2, 1024)
        if n in (46, 47):
            for r in range(8): p('v_add_f32', V(uACC + 8 * (n - 46) + r), V(uACC + 8 * (n - 46) + r), V(uACC + 16 + 8 * (n - 46) + r))
        if n in (48, 49):
            for r in range(8): p('v_add_f32', V(uACC + 8 * (n - 48) + r), V(uACC + 8 * (n - 48) + r), V(uACC + 32 + 8 * (n - 48) + r))
    p.add(stampc(5) if flag('PROFT') else stamp(4))
    for k in range(2):
        for r in range(8): p('v_add_f32', V(uACC + 8 * k + r), V(uACC + 8 * k + r), V(uACC + 48 + 8 * k + r))
        for r in range(4): p('v_cvt_pk_bf16_f32', V(uACC + 8 * k + r), V(uACC + 8 * k + 2 * r), V(uACC + 8 * k + 2 * r + 1))
        p('buffer_store_dwordx4', V(uACC + 8 * k, 4), vOUT, S(gOUT, 4), S(gRA + 4), mods=f'offen offset:{32*k}')
    p.add(stamp_flush(3, uT, gWV))
    p('s_endpgm')
    return p

def gen_k2():
    p = Prog()
    p('s_cmp_ge_u32', S(2), 256)
    p('s_cbranch_scc1', 'k2_exit')
    p.add(stamp_init())
    load_kernargs(p)
    p('v_lshrrev_b32', V(vT), 6, V(0))
    p('v_readfirstlane_b32', S(sWAVE), V(vT))
    p('s_cmp_ge_u32', S(sWAVE), 8)
    p('s_cbranch_scc1', 'k2_gemm')
    st0 = autowait(p.ins)
    a = Prog()
    a('v_and_b32', V(vLANE), 63, V(0))
    a('v_lshlrev_b32', V(vL16), 4, V(vLANE))
    a('s_and_b32', S(sT), S(2), 7)
    a('s_lshl_b32', S(sT), S(sT), 2)
    a('s_bfe_u32', S(sT + 1), S(2), (2 << 16) | 3)
    a('s_add_u32', S(sHEAD), S(sT), S(sT + 1))
    a('s_lshr_b32', S(sQB), S(2), 5)
    att_prologue(a)
    a('s_barrier')
    a.add(stamp(1))
    att_first(a)
    a.add(stamp(2)); a.add(stampc(4))
    if PROF: a.wait(lgkm=0)
    a('s_nop', 9)
    body = Prog()
    body.label('k2_loop')
    for t in range(8): body.add(unit(t))
    body('s_add_u32', S(sCH), S(sCH), 1)
    body('s_cmp_lt_u32', S(sCH), 8)
    body('s_cbranch_scc1', 'k2_loop')
    e = Prog()
    e.add(stamp(3)); e.add(stampc(5))
    att_epilogue(e)
    e.add(stamp_flush(2, vT, sWAVE))
    e.label('k2_exit')
    e('s_endpgm')
    st = autowait(a.ins, st0.copy())
    st = autowait(body.ins, st)
    st = autowait(body.ins, st)
    autowait(e.ins, st)
    g = gemm_path()
    autowait(g.ins, st0.copy())
    code = kernel_head('k2_kernel') + finish(p.ins + a.ins + body.ins + e.ins + spin_code().ins + g.ins, True)
    return code, kernel_desc('k2_kernel', NV, NV), f'; @launch kernel=k2_kernel grid=(256,1,1) block=(768,1,1) lds={LDS_ALL}'
```
